```python
import torch

def _softmax(x, axis=-1):
    return torch.softmax(x, dim=axis)
def _gelu(x):
    return torch.nn.functional.gelu(x, approximate="tanh")
def _silu(x):
    return torch.nn.functional.silu(x)
def _sigmoid(x):
    return torch.sigmoid(x)
def _layernorm(x, axis=-1, eps=1e-5):
    m = x.mean(dim=axis, keepdim=True)
    v = x.var(dim=axis, keepdim=True, unbiased=False)
    return (x - m) / torch.sqrt(v + eps)
def _scatter_add(tgt, idx, src, axis=0):
    return tgt.clone().index_add_(axis, idx, src)
def _segment_sum(src, seg, n):
    out = torch.zeros((n,) + src.shape[1:], dtype=src.dtype)
    return out.index_add_(0, seg, src)
def _pad(x, pw):
    flat = tuple(v for pair in reversed(pw) for v in pair)
    return torch.nn.functional.pad(x, flat)

kernel_name = 'standalone__swiglu_ffn__decode'

def setup_inputs():

    _w = (lambda a: (lambda t: t.to(torch.bfloat16) if t.is_floating_point() else t)(torch.as_tensor(a)))
    B, S, D, F = 4, 1, 1024, 3584
    return {
        "x": _w((lambda *s: torch.randn(*s, dtype=torch.bfloat16) * 0.05)(B, S, D)),
        "w_gate": _w((lambda *s: torch.randn(*s, dtype=torch.bfloat16) * 0.05)(D, F)),
        "w_up": _w((lambda *s: torch.randn(*s, dtype=torch.bfloat16) * 0.05)(D, F)),
        "w_down": _w((lambda *s: torch.randn(*s, dtype=torch.bfloat16) * 0.05)(F, D)),
    }

def reference(x, w_gate, w_up, w_down):
    g = _silu(x @ w_gate)
    u = x @ w_up
    return (g * u) @ w_down
```

```python
import sys, argparse

NAME = "standalone__swiglu_ffn__decode_kernel"
P1 = 0x1000
TB = 0x80000
P2 = 0x100000
TS = 0x400000

class G:
    def __init__(s, o):
        s.L = []; s.o = o; s.nst = 0; s.role = "A"
    def e(s, t): s.L.append(t)
    def stamp(s):
        i = s.nst; s.nst += 1
        h = s.o.hold
        if s.o.stamps or (h and ((h[0] == s.role and int(h[1:]) == i) or (i == 0 and int(h[1:]) == 0))):
            s.e(f"    s_memrealtime s[{40+2*i}:{41+2*i}]")
    def fin(s, lbl):
        e = s.e
        if s.o.stamps:
            e("    s_waitcnt lgkmcnt(0)")
            e("    s_mov_b64 exec, -1")
            e("    v_lshrrev_b32 v2, 6, v0")
            e("    v_lshl_add_u32 v2, s2, 2, v2")
            if s.role == "B":
                e("    v_add_u32 v2, 1020, v2")
            e("    v_lshlrev_b32 v2, 6, v2")
            e(f"    v_add_u32 v2, {TS}, v2")
            e("    s_mov_b64 exec, 1")
            for i in range(s.nst):
                e(f"    v_mov_b32 v3, s{40+2*i}")
                e(f"    global_store_dword v2, v3, s[16:17] offset:{4*i}")
            e("    s_getreg_b32 s3, hwreg(HW_REG_XCC_ID)")
            e("    v_mov_b32 v3, s3")
            e("    global_store_dword v2, v3, s[16:17] offset:60")
        h = s.o.hold
        if h and h[0] == s.role:
            i = int(h[1:])
            e("    s_waitcnt lgkmcnt(0)")
            e(f"    s_add_u32 s{40+2*i}, s{40+2*i}, 3000")
            e(f"L_hold_{lbl}:")
            e("    s_memrealtime s[66:67]")
            e("    s_waitcnt lgkmcnt(0)")
            e(f"    s_sub_u32 s66, s66, s{40+2*i}")
            e("    s_cmp_lt_i32 s66, 0")
            e(f"    s_cbranch_scc1 L_hold_{lbl}")
        e("    s_endpgm")

def gen(o):
    g = G(o); e = g.e; stamp = g.stamp
    NT = " nt" if o.nt else ""
    if o.stamps:
        e('; GROUPS [("A",0,896,9),("B",1024,1920,6),("C",1024,1920,11,4)]')
    e(f"""; @launch grid=(256,1,1) block=(512,1,1) lds=8704
.amdgcn_target "amdgcn-amd-amdhsa--gfx950"
.text
.globl {NAME}
.p2align 8
.type {NAME},@function
{NAME}:""")
    stamp()
    e("""    s_load_dwordx8 s[4:11], s[0:1], 0
    s_load_dwordx2 s[16:17], s[0:1], 48
    v_readfirstlane_b32 s3, v0
    s_and_b32 s18, s2, 7
    s_lshr_b32 s19, s2, 5
    s_bfe_u32 s21, s2, 0x20003             ; ks
    s_mul_i32 s20, s18, 7
    s_cmp_ge_u32 s3, 256
    s_cbranch_scc1 L_p2""")
    e("""    s_add_u32 s18, s18, 3
    s_and_b32 s18, s18, 7
    s_mov_b32 s26, 0xff00ff00
    s_mov_b32 s27, s26
    s_mov_b64 s[38:39], -1
    s_cmp_eq_u32 s19, s18""")
    if o.split:
        e("""    s_cselect_b32 s38, 0x00ff00ff, s38
    s_cmp_lt_u32 s19, 7
    s_cbranch_scc1 L_p1_go
    s_cmp_ge_u32 s2, 256
    s_cbranch_scc1 L_end
    s_cmp_eq_u32 s18, 7
    s_cbranch_scc1 L_end
    s_mov_b32 s19, s18
    s_mov_b32 s38, s26
L_p1_go:
    s_mov_b32 s39, s38""")
    else:
        e("""    s_cmp_lt_u32 s19, 7
    s_cbranch_scc0 L_end""")
    e("""    s_add_u32 s20, s20, s19                ; cg
    v_and_b32 v2, 0xf0, v0                 ; wv*64+kg*16
    v_lshl_add_u32 v2, s21, 8, v2          ; row0
    v_mul_u32_u24 v4, 7168, v2
    v_and_b32 v5, 7, v0
    v_lshl_add_u32 v4, v5, 4, v4
    v_add_u32 v4, 3584, v4
    v_lshl_add_u32 v4, s20, 7, v4          ; offset
    v_mov_b32 v5, 0
    v_bfe_u32 v6, v0, 2, 2                 ; batch
    v_lshlrev_b32 v6, 11, v6
    v_lshl_add_u32 v6, v2, 1, v6           ; x byte offset
    s_mov_b32 s24, 14336
    s_mov_b32 s25, 0
    v_and_b32 v1, 63, v0                   ; lane
    v_lshrrev_b32 v3, 6, v0                ; wv
    v_lshrrev_b32 v7, 7, v0                ; wv>>1
    ; publish offset: P1 + cg*8192 + sel*4096 + ks*1024 + (wv>>1)*512 + l5*16
    s_lshl_b32 s22, s20, 13
    s_add_u32 s22, s22, %d
    s_lshl_b32 s23, s21, 10
    s_add_u32 s23, s23, s22
    v_and_b32 v8, 1, v3                    ; sel
    v_lshl_add_u32 v14, v8, 12, s23
    v_lshl_add_u32 v14, v7, 9, v14
    v_lshl_add_u32 v14, v1, 4, v14
    v_mov_b32 v28, 0
    v_mov_b32 v29, 0
    v_mov_b32 v30, 0
    v_mov_b32 v31, 0
    ; publishing lanes: low half of the wave, only if this workgroup loads that matrix
    s_bitcmp1_b32 s3, 6
    s_cselect_b32 s12, 8, 0
    s_bitcmp1_b32 s38, s12
    s_cselect_b32 s12, -1, 0
    s_mov_b32 s13, 0
    s_waitcnt lgkmcnt(0)""" % P1)
    stamp()
    e("""    v_lshl_add_u64 v[10:11], v[4:5], 0, s[6:7]
    global_load_dwordx4 v[16:19], v6, s[4:5]
    global_load_dwordx4 v[20:23], v6, s[4:5] offset:16
    s_mov_b64 exec, s[26:27]
    v_lshl_add_u64 v[10:11], v[4:5], 0, s[8:9]
    s_mov_b64 exec, s[38:39]""")
    W1 = 32
    for p in range(8):
        e(f"    global_load_dwordx4 v[{W1+8*p}:{W1+8*p+3}], v[10:11], off offset:-3584{NT}")
        e(f"    global_load_dwordx4 v[{W1+8*p+4}:{W1+8*p+7}], v[10:11], off offset:3584{NT}")
        if p < 7:
            e("    v_lshl_add_u64 v[10:11], v[10:11], 0, s[24:25]")
    if o.local:
        e("""    s_cbranch_scc0 L_nopre
    s_mov_b64 exec, s[12:13]
    global_store_dwordx4 v14, v[28:31], s[16:17]
L_nopre:""")
    e("    s_mov_b64 exec, -1")
    e("    s_barrier")
    stamp()
    e("""    s_load_dword s28, s[16:17], 0
    s_mov_b32 s30, 0x05040100
    s_mov_b32 s31, 0x07060302""")
    e(f"""    v_lshlrev_b32 v12, 2, v1
    v_lshl_add_u32 v12, v3, 11, v12
    v_lshlrev_b32 v13, 10, v7
    v_lshl_add_u32 v13, v8, 5, v13
    v_bfe_u32 v8, v0, 1, 4                 ; (l5>>1): (c&3)*4+q
    v_lshl_add_u32 v13, v8, 6, v13
    v_and_b32 v9, 1, v0
    v_lshl_add_u32 v13, v9, 4, v13
    s_add_u32 s22, s22, 4096
    v_lshl_add_u32 v15, v0, 2, s22
    v_bfe_u32 v24, v0, 3, 2
    v_lshlrev_b32 v24, 7, v24
    v_and_b32 v8, 7, v0
    v_lshl_add_u32 v24, v8, 4, v24
    v_lshrrev_b32 v8, 5, v0
    v_lshl_add_u32 v24, v8, 1, v24
    v_and_b32 v26, 3, v0
    v_lshlrev_b32 v26, 3, v26              ; 8*(t&3)
    s_mov_b32 s34, 0x07060500
    s_mov_b32 s35, 0x07060501
    s_mov_b32 s36, 0x07060502
    s_mov_b32 s37, 0x07060503
    s_lshl_b32 s22, s20, 9
    s_add_u32 s22, s22, {TB}
    s_add_u32 s14, s16, s22
    s_addc_u32 s15, s17, 0
    s_getreg_b32 s29, hwreg(HW_REG_XCC_ID, 0, 4)
    s_waitcnt lgkmcnt(0)
    s_add_u32 s28, s28, 1
    s_bitset1_b32 s28, 31                  ; tag
    v_mov_b32 v25, s28
    v_lshrrev_b32 v26, v26, v25
    s_xor_b32 s29, s29, s28""")
    ACC = 96; BT = 128
    def perm(blk, c, d):
        sel = "s30" if c % 2 == 0 else "s31"
        r0 = W1 + 4*(8*blk+2*d) + c//2
        r1 = W1 + 4*(8*blk+2*d+1) + c//2
        e(f"    v_perm_b32 v{BT+4*c+d}, v{r1}, v{r0}, {sel}")
    def mfma(blk, c):
        a = 16 + 4*blk
        cc = "0" if blk == 0 else f"v[{ACC+4*c}:{ACC+4*c+3}]"
        e(f"    v_mfma_f32_16x16x32_bf16 v[{ACC+4*c}:{ACC+4*c+3}], v[{a}:{a+3}], v[{BT+4*c}:{BT+4*c+3}], {cc}")
    for blk in range(2):
        for d in range(4):
            e(f"    s_waitcnt vmcnt({14 - 8*blk - 2*d})")
            if d < 3:
                for c in range(8): perm(blk, c, d)
            else:
                if blk == 1: stamp()
                perm(blk, 0, 3); perm(blk, 1, 3); perm(blk, 2, 3)
                for c in range(8):
                    mfma(blk, c)
                    if c + 3 < 8: perm(blk, c + 3, 3)
        if blk == 0 and o.local:
            for k in range(4):
                e(f"    s_load_dword s{4+k}, s[14:15], {128*k}")
    e("    s_nop 1")
    for c in range(0, 8, 2):
        if c == 4: e("    s_nop 1")
        if c == 6: e("    s_nop 2")
        e(f"    ds_write2st64_b32 v12, v{ACC+4*c}, v{ACC+4*c+4} offset0:{c} offset1:{c+1}")
    e("""    s_mov_b64 exec, s[12:13]
    s_waitcnt lgkmcnt(0)
    s_barrier
    s_cbranch_execz L_pub_done
    ds_read_b128 v[32:35], v13
    ds_read_b128 v[36:39], v13 offset:2048
    ds_read_b128 v[40:43], v13 offset:4096
    ds_read_b128 v[44:47], v13 offset:6144""")
    if o.local:
        e("""    s_xor_b32 s4, s4, s29
    s_xor_b32 s5, s5, s29
    s_xor_b32 s6, s6, s29
    s_xor_b32 s7, s7, s29
    s_or_b32 s4, s4, s5
    s_or_b32 s6, s6, s7
    s_or_b32 s4, s4, s6""")
    e("""    s_waitcnt lgkmcnt(2)
    v_pk_add_f32 v[32:33], v[32:33], v[36:37]
    v_pk_add_f32 v[34:35], v[34:35], v[38:39]
    s_waitcnt lgkmcnt(0)
    v_pk_add_f32 v[40:41], v[40:41], v[44:45]
    v_pk_add_f32 v[42:43], v[42:43], v[46:47]
    v_pk_add_f32 v[32:33], v[32:33], v[40:41]
    v_pk_add_f32 v[34:35], v[34:35], v[42:43]
    v_perm_b32 v32, v32, v25, s34
    v_perm_b32 v33, v33, v25, s35
    v_perm_b32 v34, v34, v25, s36
    v_perm_b32 v35, v35, v25, s37""")
    if o.local:
        e("""    s_cbranch_scc1 L_pub_far
    global_store_dwordx4 v14, v[32:35], s[16:17]""")
    else:
        e("    global_store_dwordx4 v14, v[32:35], s[16:17] sc1")
    e("""L_pub_done:
    s_mov_b64 exec, -1""")
    stamp()
    if o.stamps:
        e("    s_cmp_eq_u32 s4, 0")
        e("    s_cselect_b32 s56, 0, 100")
    e("""    s_cmp_ge_u32 s2, 224
    s_cbranch_scc1 L_end""")
    if o.pk < 16:
        e("    s_barrier")
    e("""    s_mov_b32 s33, 0x40000
L_poll1:""")
    for i in range(8):
        e(f"    global_load_dword v{48+i}, v15, s[16:17] offset:{-4096+1024*i} sc1")
    e("""    s_sub_u32 s33, s33, 1
    s_cbranch_scc1 L_poll1_done""")
    for i in range(8):
        if i % 2 == 0:
            e(f"    s_waitcnt vmcnt({6-i})")
        if i == 0:
            e("    v_xor_b32 v56, v48, v26")
        else:
            e(f"    v_bitop3_b32 v56, v{48+i}, v26, v56 bitop3:0xbe")
    e("""    v_and_b32 v56, 0xff, v56
    v_cmp_ne_u32 vcc, 0, v56
    s_cbranch_vccnz L_poll1
L_poll1_done:
    s_waitcnt vmcnt(0)""")
    stamp()
    e("""    v_pk_add_f32 v[48:49], v[48:49], v[50:51]
    v_pk_add_f32 v[52:53], v[52:53], v[54:55]
    v_add_f32 v48, v48, v49                ; g
    v_add_f32 v52, v52, v53                ; u
    v_cvt_pk_bf16_f32 v49, v48, v52
    v_lshlrev_b32 v48, 16, v49             ; bf16(g)
    v_mul_f32 v50, 0xbfb8aa3b, v48
    v_exp_f32 v50, v50
    v_and_b32 v52, 0xffff0000, v49         ; bf16(u)
    v_add_f32 v50, 1.0, v50
    v_rcp_f32 v50, v50
    s_nop 0
    v_mul_f32 v50, v48, v50                ; silu
    v_cvt_pk_bf16_f32 v50, v50, v50
    v_lshlrev_b32 v50, 16, v50
    v_mul_f32 v50, v50, v52
    v_cvt_pk_bf16_f32 v50, v50, v50
    ds_write_b16 v24, v50 offset:8192
    s_waitcnt lgkmcnt(0)
    s_barrier""")
    stamp()
    if o.stamps:
        e("    s_sub_u32 s54, 0x40000, s33")
        e("    s_mul_i32 s54, s54, 100")
        e("    s_add_u32 s54, s54, s40")
        e("    s_add_u32 s56, s56, s40")
    g.nst = 9
    g.fin("A")
    if o.local:
        e("""L_pub_far:
    global_store_dwordx4 v14, v[32:35], s[16:17] sc1
    s_branch L_pub_done""")
    g.role = "B"; g.nst = 1
    W2 = 32; B2 = 64; AC2 = 96
    e(f"""L_p2:
    s_cmp_ge_u32 s2, 224
    s_cbranch_scc1 L_end
    s_load_dwordx2 s[12:13], s[0:1], 32
    s_add_u32 s20, s20, s19                ; cg
    v_bfe_u32 v7, v0, 4, 2
    v_lshlrev_b32 v7, 15, v7
    v_bfe_u32 v8, v0, 6, 2
    v_lshl_add_u32 v7, v8, 7, v7
    v_and_b32 v8, 15, v0
    v_lshl_add_u32 v7, v8, 3, v7
    s_lshl_b32 s22, s20, 17
    s_lshl_b32 s23, s21, 9
    s_add_u32 s22, s22, s23
    s_add_u32 s22, s22, 4096
    v_add_u32 v7, s22, v7
    v_add_u32 v8, 0x2000, v7
    v_add_u32 v9, 0x4000, v7
    v_add_u32 v10, 0x6000, v7
    s_waitcnt lgkmcnt(0)
    s_load_dword s28, s[16:17], 0
    v_bfe_u32 v26, v0, 2, 2
    v_lshlrev_b32 v26, 7, v26
    v_bfe_u32 v27, v0, 4, 2
    v_lshl_add_u32 v26, v27, 5, v26
    v_bfe_u32 v27, v0, 2, 6
    v_lshl_add_u32 v27, s21, 6, v27
    v_mul_u32_u24 v29, 3584, v27
    v_and_b32 v3, 3, v0
    v_lshl_add_u32 v29, v3, 4, v29
    s_lshl_b32 s22, s20, 6
    s_add_u32 s22, s22, {P2}
    v_add_u32 v29, s22, v29
""")
    if o.prew2:
        e("""    v_mov_b32 v12, 0
    v_mov_b32 v13, 0
    v_mov_b32 v14, 0
    v_mov_b32 v15, 0
    global_store_dwordx4 v29, v[12:15], s[16:17] sc1""")
    e(f"""    ; final reduction job m: wave 4 -> wg, wave 5 -> 224 + wg (wg < 32)
    s_bitcmp1_b32 s3, 6
    s_cselect_b32 s18, 224, 0
    s_add_u32 s18, s18, s2
    s_cmp_ge_u32 s3, 384
    s_cselect_b32 s18, 256, s18            ; m (>= 256: none)
    s_mul_i32 s22, s18, 3584
    s_add_u32 s22, s22, {P2}
    v_and_b32 v1, 63, v0
    v_lshl_add_u32 v11, v1, 4, s22
    s_bfe_u32 s22, s18, 0x20002
    s_lshl_b32 s22, s22, 11
    s_lshr_b32 s23, s18, 4
    s_lshl_b32 s23, s23, 7
    s_add_u32 s22, s22, s23
    s_and_b32 s23, s18, 3
    s_lshl_b32 s23, s23, 5
    s_add_u32 s22, s22, s23
    v_lshl_add_u32 v5, v3, 3, s22
    v_bfe_u32 v6, v0, 4, 1
    v_lshl_add_u32 v5, v6, 2, v5
    v_bfe_u32 v6, v0, 5, 1
    v_lshl_add_u32 v5, v6, 1, v5
    s_mov_b32 s30, 0x05040100
    s_mov_b32 s31, 0x07060302
    s_mov_b32 s34, 0x07060500
    s_mov_b32 s35, 0x07060501
    s_mov_b32 s36, 0x07060502
    s_mov_b32 s37, 0x07060503
    s_lshl_b32 s22, s20, 2
    s_add_u32 s22, s22, s21
    s_lshl_b32 s22, s22, 7
    s_add_u32 s22, s22, {TB}
    v_lshl_add_u32 v2, v1, 2, s22
    s_getreg_b32 s29, hwreg(HW_REG_XCC_ID, 0, 4)
    s_waitcnt lgkmcnt(0)
    s_add_u32 s28, s28, 1
    s_bitset1_b32 s28, 31                  ; tag
    v_mov_b32 v25, s28""")
    if o.local:
        e("""    s_cmp_eq_u32 s3, 256
    s_cbranch_scc0 L_notab
    v_xor_b32 v4, s29, v25
    s_mov_b32 exec_hi, 0
    global_store_dword v2, v4, s[16:17]
    s_mov_b32 exec_hi, -1
L_notab:""")
    e("    s_barrier")
    stamp()
    for r in range(16):
        e(f"    global_load_dwordx2 v[{W2+2*r}:{W2+2*r+1}], v{7+r//4}, s[10:11] offset:{-4096+2048*(r%4)}{NT}")
    stamp()
    e("""    s_lshr_b32 s4, s28, 8
    s_lshr_b32 s5, s28, 16
    s_lshr_b32 s6, s28, 24
    v_mov_b32 v124, 0
    v_mov_b32 v125, 0
    v_mov_b32 v126, 0
    v_mov_b32 v127, 0
    s_barrier""")
    def perm2(kb, c, d):
        sel = "s30" if c % 2 == 0 else "s31"
        r0 = W2 + 2*(8*kb+2*d) + c//2
        r1 = W2 + 2*(8*kb+2*d+1) + c//2
        e(f"    v_perm_b32 v{B2+16*kb+4*c+d}, v{r1}, v{r0}, {sel}")
    for kb in range(2):
        for d in range(4):
            n = 14-8*kb-2*d
            e(f"    s_waitcnt vmcnt({n})")
            if n == o.pk:
                e("    s_barrier")
            for c in range(4): perm2(kb, c, d)
    stamp()
    e("""    s_barrier""")
    stamp()
    e("""    ds_read_b128 v[16:19], v26 offset:8192
    ds_read_b128 v[20:23], v26 offset:8208
    s_waitcnt lgkmcnt(%d)""" % (0 if (o.stamps or o.hold == "B4") else 1))
    for c in range(4):
        e(f"    v_mfma_f32_16x16x32_bf16 v[{AC2+4*c}:{AC2+4*c+3}], v[16:19], v[{B2+4*c}:{B2+4*c+3}], 0")
    e("    s_waitcnt lgkmcnt(0)")
    for c in range(4):
        e(f"    v_mfma_f32_16x16x32_bf16 v[{AC2+4*c}:{AC2+4*c+3}], v[20:23], v[{B2+16+4*c}:{B2+16+4*c+3}], v[{AC2+4*c}:{AC2+4*c+3}]")
    e("    s_nop 4")
    for c in range(4):
        e(f"    v_perm_b32 v{12+c}, v{AC2+4*c}, v25, s{34+c}")
    e("    global_store_dwordx4 v29, v[12:15], s[16:17] sc1")
    stamp()
    if o.stamps:
        e("    s_mov_b32 s52, s40")
        e("    s_mov_b32 s54, s40")
        e("    s_mov_b32 s56, s40")
        e("    s_mov_b32 s58, s40")
        e("    s_mov_b32 s60, s40")
    e("""    s_cmp_ge_u32 s18, 256
    s_cbranch_scc1 L_p2_end
    s_mov_b32 s33, 0x40000
    s_mov_b32 s26, 0x000f000f
    s_mov_b32 s27, s26""")
    if o.w2:
        e("    s_waitcnt vmcnt(0)")
    stamp()
    R = 112
    e("L_poll2:")
    for t in range(3):
        e(f"    global_load_dwordx4 v[{R+4*t}:{R+3+4*t}], v11, s[16:17] offset:{1024*t} sc1")
    e(f"""    s_mov_b32 exec_hi, 0
    global_load_dwordx4 v[{R+12}:{R+15}], v11, s[16:17] offset:3072 sc1
    s_mov_b32 exec_hi, -1
    s_sub_u32 s33, s33, 1
    s_cbranch_scc1 L_poll2_done""")
    sr = ["s28", "s4", "s5", "s6"]
    for t in range(4):
        e(f"    s_waitcnt vmcnt({3-t})")
        if t == 3:
            e("    s_mov_b32 exec_hi, 0")
        for c in range(4):
            if t == 0 and c == 0:
                e(f"    v_xor_b32 v8, s28, v{R}")
            else:
                e(f"    v_bitop3_b32 v8, v{R+4*t+c}, {sr[c]}, v8 bitop3:0xbe")
    e("""    s_mov_b32 exec_hi, -1
    v_and_b32 v8, 0xff, v8
    v_cmp_ne_u32 vcc, 0, v8
    s_cbranch_vccnz L_poll2
L_poll2_done:
    s_waitcnt vmcnt(0)""")
    stamp()
    e(f"""    v_pk_add_f32 v[{R}:{R+1}], v[{R}:{R+1}], v[{R+4}:{R+5}]
    v_pk_add_f32 v[{R+2}:{R+3}], v[{R+2}:{R+3}], v[{R+6}:{R+7}]
    v_pk_add_f32 v[{R+8}:{R+9}], v[{R+8}:{R+9}], v[{R+12}:{R+13}]
    v_pk_add_f32 v[{R+10}:{R+11}], v[{R+10}:{R+11}], v[{R+14}:{R+15}]
    v_pk_add_f32 v[32:33], v[{R}:{R+1}], v[{R+8}:{R+9}]
    v_pk_add_f32 v[34:35], v[{R+2}:{R+3}], v[{R+10}:{R+11}]
    s_nop 0
    v_permlane32_swap_b32 v32, v33
    v_permlane32_swap_b32 v34, v35
    s_nop 0
    v_add_f32 v32, v32, v33
    v_add_f32 v34, v34, v35
    s_nop 1
    v_permlane16_swap_b32 v32, v34
    s_nop 0
    v_add_f32 v32, v32, v34
    s_nop 1
    v_add_f32_dpp v32, v32, v32 row_ror:8 row_mask:0xf bank_mask:0xf
    s_nop 1
    v_add_f32_dpp v32, v32, v32 row_ror:4 row_mask:0xf bank_mask:0xf
    v_cvt_pk_bf16_f32 v32, v32, v32
    s_mov_b64 exec, s[26:27]
    global_store_short v5, v32, s[12:13]{" sc1" if o.outsc1 else ""}
    s_cmp_eq_u32 s18, 0
    s_cbranch_scc0 L_c_noupd
    v_mov_b32 v6, 0
    s_mov_b64 exec, 1
    global_store_dword v6, v25, s[16:17] sc1
L_c_noupd:""")
    stamp()
    if o.stamps:
        e("    s_waitcnt vmcnt(0)")
    stamp()
    if o.stamps:
        e("    s_sub_u32 s60, 0x40000, s33")
        e("    s_mul_i32 s60, s60, 100")
        e("    s_add_u32 s60, s60, s40")
    g.nst = 11
    e("L_p2_end:")
    g.fin("B")
    e(f"""L_end:
    s_endpgm
.section .rodata,"a"
.p2align 6
.amdhsa_kernel {NAME}
  .amdhsa_next_free_vgpr 160
  .amdhsa_next_free_sgpr 72
  .amdhsa_accum_offset 160
  .amdhsa_group_segment_fixed_size 0
  .amdhsa_kernarg_size 56
  .amdhsa_user_sgpr_count 2
  .amdhsa_user_sgpr_kernarg_segment_ptr 1
  .amdhsa_system_sgpr_workgroup_id_x 1
  .amdhsa_float_denorm_mode_32 3
.end_amdhsa_kernel""")
    return "\n".join(g.L) + "\n"

if __name__ == "__main__":
    ap = argparse.ArgumentParser()
    ap.add_argument("-o", required=True)
    ap.add_argument("--stamps", action="store_true")
    ap.add_argument("--nt", type=int, default=1)
    ap.add_argument("--split", type=int, default=1)
    ap.add_argument("--local", type=int, default=1)
    ap.add_argument("--pk", type=int, default=2)
    ap.add_argument("--w2", type=int, default=1)
    ap.add_argument("--outsc1", type=int, default=0)
    ap.add_argument("--prew2", type=int, default=0)
    ap.add_argument("--hold")
    a = ap.parse_args()
    open(a.o, "w").write(gen(a))
```

```python
import sys, argparse

NAME = "standalone__swiglu_ffn__decode_kernel"
P1 = 0x1000
HR = 0x80000
P2 = 0x100000
TS = 0x400000
SB = 64

class G:
    def __init__(s, o):
        s.L = []; s.o = o; s.role = "A"
    def e(s, t): s.L.append(t)
    def stamp(s, i):
        h = s.o.hold
        if s.o.stamps or (h and ((h[0] == s.role and int(h[1:]) == i) or (i == 0 and int(h[1:]) == 0))):
            s.e(f"    s_memrealtime s[{SB+2*i}:{SB+1+2*i}]")
    def count(s, i, reg="s33"):
        if s.o.stamps:
            s.e(f"    s_sub_u32 s{SB+2*i}, 0x40000, {reg}")
            s.e(f"    s_mul_i32 s{SB+2*i}, s{SB+2*i}, 100")
            s.e(f"    s_add_u32 s{SB+2*i}, s{SB+2*i}, s{SB}")
    def fin(s, lbl, n, base):
        e = s.e
        if s.o.stamps:
            e("    s_waitcnt lgkmcnt(0)")
            e("    s_mov_b64 exec, -1")
            e("    v_lshrrev_b32 v2, 6, v0")
            e("    v_lshlrev_b32 v2, 6, v2")
            for i in range(n):
                e(f"    v_mov_b32 v3, s{SB+2*i}")
                e(f"    ds_write_b32 v2, v3 offset:{16384+4*i}")
            e("    s_waitcnt lgkmcnt(0)")
            if lbl in ("B", "C"):
                e(f"    s_add_u32 s96, s{SB}, 1000")
                e(f"L_dly_{lbl}:")
                e("    s_sleep 8")
                e("    s_memrealtime s[98:99]")
                e("    s_waitcnt lgkmcnt(0)")
                e("    s_sub_u32 s98, s98, s96")
                e("    s_cmp_lt_i32 s98, 0")
                e(f"    s_cbranch_scc1 L_dly_{lbl}")
                e("    v_and_b32 v4, 15, v0")
                e("    v_lshl_add_u32 v2, v4, 2, v2")
                e("    ds_read_b32 v5, v2 offset:16384")
                e("    ds_read_b32 v6, v2 offset:16128")
                e("    v_bfe_u32 v3, v0, 6, 2")
                e("    v_lshl_add_u32 v3, s2, 2, v3")
                e("    v_lshlrev_b32 v3, 6, v3")
                e("    v_lshl_add_u32 v3, v4, 2, v3")
                e(f"    v_add_u32 v7, {TS + 1024*64}, v3")
                e(f"    v_add_u32 v3, {TS}, v3")
                e("    s_mov_b64 exec, 0xffff")
                e("    s_waitcnt lgkmcnt(0)")
                e("    global_store_dword v7, v5, s[16:17]")
                e("    global_store_dword v3, v6, s[16:17]")
        h = s.o.hold
        if h and h[0] == s.role:
            i = int(h[1:])
            e("    s_waitcnt lgkmcnt(0)")
            e(f"    s_add_u32 s{SB+2*i}, s{SB+2*i}, 3000")
            e(f"L_hold_{lbl}:")
            e("    s_memrealtime s[98:99]")
            e("    s_waitcnt lgkmcnt(0)")
            e(f"    s_sub_u32 s98, s98, s{SB+2*i}")
            e("    s_cmp_lt_i32 s98, 0")
            e(f"    s_cbranch_scc1 L_hold_{lbl}")
        e("    s_endpgm")

def gen(o):
    g = G(o); e = g.e; stamp = g.stamp
    NT = " nt" if o.nt else ""
    if o.stamps:
        e('; GROUPS [("A",0,896,6),("B",1024,1920,9),("H",896,1024,5,4),("C",1920,2048,10)]')
    e(f"""; @launch grid=(256,1,1) block=(512,1,1) lds={16896 if o.stamps else 16384}
.amdgcn_target "amdgcn-amd-amdhsa--gfx950"
.text
.globl {NAME}
.p2align 8
.type {NAME},@function
{NAME}:""")
    stamp(0)
    e(f"""    s_load_dwordx8 s[4:11], s[0:1], 0
    s_load_dwordx4 s[12:15], s[0:1], 32
    s_load_dwordx2 s[16:17], s[0:1], 48
    v_readfirstlane_b32 s3, v0
    s_cmp_ge_u32 s2, 256
    s_cbranch_scc1 L_end
    s_and_b32 s18, s2, 7                   ; class
    s_lshr_b32 s19, s2, 5
    s_bfe_u32 s21, s2, 0x20003             ; ks
    s_add_u32 s22, s18, 3
    s_and_b32 s22, s22, 7
    s_mov_b32 s26, 0xff00ff00
    s_mov_b32 s27, s26
    s_cmp_eq_u32 s19, s22
    s_cselect_b32 s38, 0x00ff00ff, -1
    s_cselect_b32 s23, 0, s26
    s_cmp_eq_u32 s19, 7
    s_cselect_b32 s38, s23, s38
    s_cselect_b32 s22, s22, s19
    s_mov_b32 s39, s38
    s_mul_i32 s20, s18, 7
    s_add_u32 s20, s20, s22
    s_lshl_b32 s22, s20, 13
    s_lshl_b32 s23, s21, 10
    s_add_u32 s23, s23, s22
    s_add_u32 s23, s23, {P1}
    v_and_b32 v1, 63, v0                   ; lane
    v_bfe_u32 v8, v0, 6, 1                 ; sel
    v_bfe_u32 v7, v0, 7, 1
    v_lshl_add_u32 v14, v8, 12, s23
    v_lshl_add_u32 v14, v7, 9, v14
    v_lshl_add_u32 v14, v1, 4, v14
    s_bitcmp1_b32 s3, 6
    s_cselect_b32 s48, 8, 0
    s_bitcmp1_b32 s38, s48
    s_cselect_b32 s48, -1, 0
    s_mov_b32 s49, 0
    s_lshr_b32 s29, s2, 3                  ; i
    s_cmp_ge_u32 s3, 256
    s_cbranch_scc1 L_upper
    s_getreg_b32 s50, hwreg(HW_REG_XCC_ID, 0, 4)
    s_add_u32 s50, s50, 1
    v_mov_b32 v3, s50
    s_lshl_b32 s22, s18, 2
    s_add_u32 s22, s22, s21
    s_lshl_b32 s22, s22, 2
    v_mov_b32 v9, s22
    s_cmp_eq_u32 s38, 0
    s_cbranch_scc1 L_hjob_lo""")
    e("""    v_and_b32 v2, 0xf0, v0                 ; wv*64+kg*16
    v_lshl_add_u32 v2, s21, 8, v2          ; row0
    v_mul_u32_u24 v4, 7168, v2
    v_and_b32 v5, 7, v0
    v_lshl_add_u32 v4, v5, 4, v4
    v_add_u32 v4, 3584, v4
    v_lshl_add_u32 v4, s20, 7, v4          ; offset
    v_mov_b32 v5, 0
    v_bfe_u32 v6, v0, 2, 2                 ; batch
    v_lshlrev_b32 v6, 11, v6
    v_lshl_add_u32 v6, v2, 1, v6
    s_mov_b32 s24, 14336
    s_mov_b32 s25, 0
    s_sub_u32 s22, s19, s3
    s_cmp_eq_u32 s22, 7
    s_waitcnt lgkmcnt(0)""")
    stamp(1)
    e("""    v_lshl_add_u64 v[10:11], v[4:5], 0, s[6:7]
    s_cbranch_scc0 L_notab
    s_mov_b64 exec, 1
    global_store_dword v9, v3, s[14:15] sc1
L_notab:
    s_mov_b64 exec, s[48:49]
    s_cbranch_execz L_nopre
    global_load_dword v28, v14, s[16:17]
L_nopre:
    s_mov_b64 exec, -1
    global_load_dwordx4 v[16:19], v6, s[4:5]
    global_load_dwordx4 v[20:23], v6, s[4:5] offset:16
    s_mov_b64 exec, s[26:27]
    v_lshl_add_u64 v[10:11], v[4:5], 0, s[8:9]
    s_mov_b64 exec, s[38:39]""")
    W1 = 32
    for p in range(8):
        e(f"    global_load_dwordx4 v[{W1+8*p}:{W1+8*p+3}], v[10:11], off offset:-3584{NT}")
        e(f"    global_load_dwordx4 v[{W1+8*p+4}:{W1+8*p+7}], v[10:11], off offset:3584{NT}")
        if p < 7:
            e("    v_lshl_add_u64 v[10:11], v[10:11], 0, s[24:25]")
    e("    s_mov_b64 exec, -1")
    if o.b0 == 16:
        e("    s_barrier")
    stamp(2)
    def tagsetup():
        e("""    s_add_u32 s28, s28, 1
    s_bitset1_b32 s28, 31                  ; tag
    v_mov_b32 v25, s28""")
    def consts():
        e("""    s_mov_b32 s30, 0x05040100
    s_mov_b32 s31, 0x07060302
    s_mov_b32 s34, 0x07060500
    s_mov_b32 s35, 0x07060501
    s_mov_b32 s36, 0x07060502
    s_mov_b32 s37, 0x07060503""")
    def tabload():
        e("""    s_lshl_b32 s22, s18, 4
    s_load_dwordx4 s[40:43], s[14:15], s22
    s_getreg_b32 s50, hwreg(HW_REG_XCC_ID, 0, 4)
    s_add_u32 s50, s50, 1
    s_mov_b32 s51, s50""")
    def tabcheck():
        e("""    s_xor_b64 s[40:41], s[40:41], s[50:51]
    s_xor_b64 s[42:43], s[42:43], s[50:51]
    s_or_b64 s[40:41], s[40:41], s[42:43]""")
        if not o.local:
            e("    s_cmp_eq_u32 s2, s2")
    def reduce_publish(addr_lds, off, addr_g, far, done):
        e(f"""    ds_read_b128 v[32:35], {addr_lds} offset:{off}
    ds_read_b128 v[36:39], {addr_lds} offset:{off+2048}
    ds_read_b128 v[40:43], {addr_lds} offset:{off+4096}
    ds_read_b128 v[44:47], {addr_lds} offset:{off+6144}""")
        tabcheck()
        e(f"""    s_waitcnt lgkmcnt(2)
    v_pk_add_f32 v[32:33], v[32:33], v[36:37]
    v_pk_add_f32 v[34:35], v[34:35], v[38:39]
    s_waitcnt lgkmcnt(0)
    v_pk_add_f32 v[40:41], v[40:41], v[44:45]
    v_pk_add_f32 v[42:43], v[42:43], v[46:47]
    v_pk_add_f32 v[32:33], v[32:33], v[40:41]
    v_pk_add_f32 v[34:35], v[34:35], v[42:43]
    v_perm_b32 v32, v32, v25, s34
    v_perm_b32 v33, v33, v25, s35
    v_perm_b32 v34, v34, v25, s36
    v_perm_b32 v35, v35, v25, s37
    s_cbranch_scc1 {far}
    global_store_dwordx4 {addr_g}, v[32:35], s[16:17]
{done}:""")
    e("    s_load_dword s28, s[16:17], 0")
    consts()
    e(f"""    v_lshrrev_b32 v3, 6, v0                ; wv
    v_lshlrev_b32 v12, 2, v1
    v_lshl_add_u32 v12, v3, 11, v12
    v_lshlrev_b32 v13, 10, v7
    v_lshl_add_u32 v13, v8, 5, v13
    v_bfe_u32 v8, v0, 1, 4                 ; (l5>>1): (c&3)*4+q
    v_lshl_add_u32 v13, v8, 6, v13
    v_and_b32 v9, 1, v0
    v_lshl_add_u32 v13, v9, 4, v13
    s_waitcnt lgkmcnt(0)""")
    tagsetup()
    ACC = 96; BT = 128
    def perm(blk, c, d):
        sel = "s30" if c % 2 == 0 else "s31"
        r0 = W1 + 4*(8*blk+2*d) + c//2
        r1 = W1 + 4*(8*blk+2*d+1) + c//2
        e(f"    v_perm_b32 v{BT+4*c+d}, v{r1}, v{r0}, {sel}")
    def mfma(blk, c, a=None):
        a = 16 + 4*blk
        cc = "0" if blk == 0 else f"v[{ACC+4*c}:{ACC+4*c+3}]"
        e(f"    v_mfma_f32_16x16x32_bf16 v[{ACC+4*c}:{ACC+4*c+3}], v[{a}:{a+3}], v[{BT+4*c}:{BT+4*c+3}], {cc}")
    def ldswrite(off64):
        for c in range(0, 8, 2):
            if c == 4: e("    s_nop 1")
            if c == 6: e("    s_nop 2")
            e(f"    ds_write2st64_b32 v12, v{ACC+4*c}, v{ACC+4*c+4} offset0:{off64+c} offset1:{off64+c+1}")
    for blk in range(2):
        for d in range(4):
            n = 14 - 8*blk - 2*d
            e(f"    s_waitcnt vmcnt({n})")
            if n == o.b0:
                e("    s_barrier")
            if d < 3:
                for c in range(8): perm(blk, c, d)
            else:
                if blk == 1: stamp(3)
                perm(blk, 0, 3); perm(blk, 1, 3); perm(blk, 2, 3)
                for c in range(8):
                    mfma(blk, c)
                    if c + 3 < 8: perm(blk, c + 3, 3)
        if blk == 0: tabload()
    e("    s_nop 1")
    ldswrite(0)
    e("""    s_mov_b64 exec, s[48:49]
    s_waitcnt lgkmcnt(0)
    s_barrier
    s_cbranch_execz L_pub_done""")
    reduce_publish("v13", 0, "v14", "L_pub_far", "L_pub_done")
    stamp(4)
    e("""    s_cmp_ge_u32 s2, 224
    s_cbranch_scc1 L_hjob_lo2""")
    if o.n1 < 8:
        e("    s_barrier")
    if o.stamps:
        e("    s_cmp_eq_u64 s[40:41], 0")
        e(f"    s_cselect_b32 s{SB+10}, 0, 100")
        e(f"    s_add_u32 s{SB+10}, s{SB+10}, s{SB}")
    g.fin("A", 6, 0)
    e("""L_pub_far:
    global_store_dwordx4 v14, v[32:35], s[16:17] sc1
    s_branch L_pub_done""")
    g.role = "B"
    e(f"""L_upper:
    v_bfe_u32 v3, v0, 6, 2                 ; v
    v_bfe_u32 v2, v0, 3, 2
    v_lshl_add_u32 v2, v3, 2, v2           ; piece
    v_mul_u32_u24 v15, 3584, v2
    v_and_b32 v2, 7, v0
    v_lshl_add_u32 v15, v2, 4, v15
    s_mul_i32 s22, s18, 57344
    s_lshl_b32 s23, s29, 7
    s_add_u32 s22, s22, s23
    s_add_u32 s22, s22, {P2}
    v_add_u32 v15, s22, v15
    s_waitcnt lgkmcnt(0)
    s_load_dword s28, s[16:17], 0
    s_cmp_ge_u32 s2, 224
    s_cbranch_scc1 L_hjob_hi
    v_bfe_u32 v2, v0, 4, 3                 ; 4*(v&1) + kg
    v_lshlrev_b32 v4, 11, v2
    v_lshl_add_u32 v4, v7, 17, v4
    v_and_b32 v5, 15, v0
    v_lshl_add_u32 v4, v5, 4, v4
    s_lshl_b32 s22, s29, 18
    s_lshl_b32 s23, s18, 8
    s_add_u32 s22, s22, s23
    v_add_u32 v16, s22, v4""")
    for k in range(1, 8):
        e(f"    v_add_u32 v{16+k}, {0x4000*k}, v16")
    e(f"""    ; h offset: HR + copy*57344 + (2i + (v>>1))*1024 + (4*(v&1)+kg)*128 + q*32
    v_lshlrev_b32 v26, 7, v2
    v_lshl_add_u32 v26, v7, 10, v26
    v_lshl_add_u32 v26, v5, 3, v26         ; q*32 + r*8
    s_mul_i32 s22, s18, {57344 if o.ncopy == 8 else 0}
    s_lshl_b32 s23, s29, 11
    s_add_u32 s22, s22, s23
    s_add_u32 s22, s22, {HR}
    v_add_u32 v26, s22, v26
    v_lshlrev_b32 v12, 2, v1
    v_lshl_add_u32 v12, v3, 11, v12
    v_lshlrev_b32 v13, 4, v1
    v_lshl_add_u32 v13, v3, 9, v13""")
    consts()
    e("    s_waitcnt lgkmcnt(0)")
    tagsetup()
    e("    s_lshr_b32 s29, s28, 16")
    e("    s_xor_b32 s29, s29, s28")
    e("    v_mov_b32 v64, 0")
    e("    v_mov_b32 v65, 0")
    if o.pre2:
        e("""    s_mov_b32 exec_hi, 0
    global_load_dword v28, v15, s[16:17]
    s_mov_b32 exec_hi, -1""")
    if o.preh:
        e("    global_load_dword v29, v26, s[16:17]")
    e("    s_barrier")
    stamp(1)
    for r in range(o.n1):
        e(f"    global_load_dwordx4 v[{W1+4*r}:{W1+4*r+3}], v{16+r}, s[10:11]{NT}")
    tabload()
    e("""    s_mov_b32 s33, 0x40000
    s_barrier""")
    if o.n1 < 8:
        e("    s_barrier")
    for r in range(o.n1, 8):
        e(f"    global_load_dwordx4 v[{W1+4*r}:{W1+4*r+3}], v{16+r}, s[10:11]{NT}")
    stamp(2)
    HV = 64
    hld = f"    global_atomic_add_x2 v[{HV+2}:{HV+3}], v26, v[{HV}:{HV+1}], s[16:17] sc0" if o.atom else f"    global_load_dwordx2 v[{HV+2}:{HV+3}], v26, s[16:17] sc1"
    nd = 4
    issued = 0
    for d in range(4):
        e(f"    s_waitcnt vmcnt({6 - 2*d + issued})")
        if d == 3: stamp(3)
        if 6 - 2*d == o.pk:
            e(hld); issued = 1
        for c in range(8): perm(0, c, d)
    e(f"""    s_branch L_pollh_chk
L_pollh:
{hld}
    s_sub_u32 s33, s33, 1
    s_cbranch_scc1 L_pollh_done
L_pollh_chk:
    s_waitcnt vmcnt(0)
    v_xor_b32 v8, s28, v{HV+2}
    v_bitop3_b32 v8, v{HV+3}, s29, v8 bitop3:0xbe
    v_and_b32 v8, 0xffff, v8
    v_cmp_ne_u32 vcc, 0, v8
    s_cbranch_vccnz L_pollh
L_pollh_done:""")
    stamp(4)
    e(f"    v_perm_b32 v8, v{HV+3}, v{HV+2}, s31")
    if nd < 4:
        for d in range(nd, 4):
            for c in range(8): perm(0, c, d)
    else:
        e("    s_nop 1")
    for d in range(4):
        e(f"    v_mov_b32_dpp v{16+d}, v8 quad_perm:[{d},{d},{d},{d}] row_mask:0xf bank_mask:0xf")
    e("    s_nop 1")
    for c in range(8): mfma(0, c)
    e("    s_nop 3")
    ldswrite(32)
    e("""    s_mov_b32 exec_hi, 0
    s_waitcnt lgkmcnt(0)
    s_barrier""")
    stamp(5)
    if o.stamps: e("    s_waitcnt lgkmcnt(0)")
    reduce_publish("v13", 8192, "v15", "L_pub2_far", "L_pub2_done")
    stamp(6)
    g.count(7)
    if o.stamps:
        e("    s_cmp_eq_u64 s[40:41], 0")
        e(f"    s_cselect_b32 s{SB+16}, 0, 100")
        e(f"    s_add_u32 s{SB+16}, s{SB+16}, s{SB}")
    g.fin("B", 9, 1024)
    e("""L_pub2_far:
    global_store_dwordx4 v15, v[32:35], s[16:17] sc1
    s_branch L_pub2_done""")
    g.role = "H"
    e("""L_hjob_lo:                                 ; lower waves of a helper with no weights to load
    s_waitcnt lgkmcnt(0)
    s_load_dword s28, s[16:17], 0
    s_cmp_eq_u32 s3, 0
    s_cbranch_scc0 L_notab2
    s_mov_b64 exec, 1
    global_store_dword v9, v3, s[14:15] sc1
    s_mov_b64 exec, -1
L_notab2:
    s_waitcnt lgkmcnt(0)""")
    tagsetup()
    e("""L_hjob_lo2:
    s_mov_b64 exec, -1
    s_cmp_ge_u32 s3, 192
    s_cbranch_scc1 L_end
    s_branch L_hjob
L_hjob_hi:
    v_mov_b32 v6, 0
    global_load_dword v7, v6, s[12:13]
    s_waitcnt lgkmcnt(0)""")
    tagsetup()
    e(f"""    s_cmp_eq_u32 s38, 0
    s_cbranch_scc1 L_hjob
    s_barrier
    s_barrier
L_hjob:
    s_lshr_b32 s22, s3, 6
    s_xor_b32 s22, s22, 4                  ; cgl
    s_mul_i32 s20, s18, 7
    s_add_u32 s20, s20, s22
    s_lshl_b32 s23, s21, 8
    s_lshl_b32 s22, s20, 13
    s_add_u32 s22, s22, s23
    s_add_u32 s22, s22, {P1 + 4096}
    v_lshl_add_u32 v15, v1, 2, s22
    s_lshl_b32 s22, s20, 10
    s_add_u32 s22, s22, s23
    s_add_u32 s22, s22, {HR}
    v_lshl_add_u32 v16, v1, 2, s22""")
    for k in range(1, o.ncopy):
        e(f"    v_add_u32 v{16+k}, {57344*k}, v16")
    e("""    v_and_b32 v26, 3, v0
    v_lshlrev_b32 v26, 3, v26
    v_lshrrev_b32 v26, v26, v25
    v_and_b32 v27, 1, v0
    v_lshrrev_b32 v28, 16, v25
    v_mul_u32_u24 v27, v27, v28
    v_xor_b32 v27, v27, v25
    s_mov_b32 s30, 0x05040100
    s_mov_b32 s33, 0x40000""")
    stamp(1)
    e("L_poll1:")
    for i in range(8):
        e(f"    global_load_dword v{48+i}, v15, s[16:17] offset:{-4096+1024*i} sc1")
    e("""    s_sub_u32 s33, s33, 1
    s_cbranch_scc1 L_poll1_done""")
    for i in range(8):
        if i % 2 == 0:
            e(f"    s_waitcnt vmcnt({6-i})")
        if i == 0:
            e("    v_xor_b32 v56, v48, v26")
        else:
            e(f"    v_bitop3_b32 v56, v{48+i}, v26, v56 bitop3:0xbe")
    e("""    v_and_b32 v56, 0xff, v56
    v_cmp_ne_u32 vcc, 0, v56
    s_cbranch_vccnz L_poll1
L_poll1_done:
    s_waitcnt vmcnt(0)""")
    stamp(2)
    e("""    v_pk_add_f32 v[48:49], v[48:49], v[50:51]
    v_pk_add_f32 v[52:53], v[52:53], v[54:55]
    v_add_f32 v48, v48, v49                ; g
    v_add_f32 v52, v52, v53                ; u
    v_cvt_pk_bf16_f32 v49, v48, v52
    v_lshlrev_b32 v48, 16, v49             ; bf16(g)
    v_mul_f32 v50, 0xbfb8aa3b, v48
    v_exp_f32 v50, v50
    v_and_b32 v52, 0xffff0000, v49         ; bf16(u)
    v_add_f32 v50, 1.0, v50
    v_rcp_f32 v50, v50
    s_nop 0
    v_mul_f32 v50, v48, v50                ; silu
    v_cvt_pk_bf16_f32 v50, v50, v50
    v_lshlrev_b32 v50, 16, v50
    v_mul_f32 v50, v50, v52
    v_cvt_pk_bf16_f32 v50, v50, v50
    v_perm_b32 v50, v50, v27, s30""")
    if o.hbar:
        e("    s_barrier")
    for k in range(o.ncopy):
        e(f"    global_store_dword v{16+k}, v50, s[16:17] sc1")
    stamp(3)
    g.count(4)
    e("""    s_cmp_ge_u32 s3, 256
    s_cbranch_scc1 L_cjob""")
    g.fin("H", 5, 2048)
    g.role = "C"
    R = 32
    e(f"""L_cjob:
    s_bfe_u32 s22, s3, 0x20006
    s_lshl_b32 s23, s21, 2
    s_add_u32 s19, s22, s23                ; piece
    s_mul_i32 s22, s19, 3584
    s_mul_i32 s23, s18, 57344
    s_add_u32 s22, s22, s23
    s_add_u32 s22, s22, {P2}
    v_lshl_add_u32 v11, v1, 4, s22
    s_and_b32 s22, s19, 1
    s_lshl_b32 s22, s22, 12
    s_lshl_b32 s23, s18, 8
    s_add_u32 s22, s22, s23
    s_and_b32 s23, s19, 14
    s_add_u32 s22, s22, s23
    v_bfe_u32 v2, v0, 2, 1
    v_lshl_add_u32 v5, v2, 11, s22
    v_and_b32 v2, 3, v0
    v_lshl_add_u32 v5, v2, 6, v5
    v_bfe_u32 v2, v0, 4, 1
    v_lshl_add_u32 v5, v2, 5, v5
    v_bfe_u32 v2, v0, 5, 1
    v_lshl_add_u32 v5, v2, 4, v5
    v_mov_b32 v6, 0
    s_lshr_b32 s4, s28, 8
    s_lshr_b32 s5, s28, 16
    s_lshr_b32 s6, s28, 24
    v_mov_b32 v{R+12}, 0
    v_mov_b32 v{R+13}, 0
    v_mov_b32 v{R+14}, 0
    v_mov_b32 v{R+15}, 0
    s_mov_b32 s33, 0x40000
    s_mov_b32 s26, 0x00ff00ff
    s_mov_b32 s27, s26""")
    stamp(5)
    e("L_poll2:")
    for t in range(3):
        e(f"    global_load_dwordx4 v[{R+4*t}:{R+3+4*t}], v11, s[16:17] offset:{1024*t} sc1")
    e(f"""    s_mov_b32 exec_hi, 0
    global_load_dwordx4 v[{R+12}:{R+15}], v11, s[16:17] offset:3072 sc1
    s_mov_b32 exec_hi, -1
    s_sub_u32 s33, s33, 1
    s_cbranch_scc1 L_poll2_done""")
    sr = ["s28", "s4", "s5", "s6"]
    for t in range(4):
        e(f"    s_waitcnt vmcnt({3-t})")
        if t == 3:
            e("    s_mov_b32 exec_hi, 0")
        for c in range(4):
            if t == 0 and c == 0:
                e(f"    v_xor_b32 v8, s28, v{R}")
            else:
                e(f"    v_bitop3_b32 v8, v{R+4*t+c}, {sr[c]}, v8 bitop3:0xbe")
    e("""    s_mov_b32 exec_hi, -1
    v_and_b32 v8, 0xff, v8
    v_cmp_ne_u32 vcc, 0, v8
    s_cbranch_vccnz L_poll2
L_poll2_done:
    s_waitcnt vmcnt(0)""")
    stamp(6)
    e(f"""    v_pk_add_f32 v[{R}:{R+1}], v[{R}:{R+1}], v[{R+4}:{R+5}]
    v_pk_add_f32 v[{R+2}:{R+3}], v[{R+2}:{R+3}], v[{R+6}:{R+7}]
    v_pk_add_f32 v[{R+8}:{R+9}], v[{R+8}:{R+9}], v[{R+12}:{R+13}]
    v_pk_add_f32 v[{R+10}:{R+11}], v[{R+10}:{R+11}], v[{R+14}:{R+15}]
    v_pk_add_f32 v[32:33], v[{R}:{R+1}], v[{R+8}:{R+9}]
    v_pk_add_f32 v[34:35], v[{R+2}:{R+3}], v[{R+10}:{R+11}]
    s_nop 0
    v_permlane32_swap_b32 v32, v33
    v_permlane32_swap_b32 v34, v35
    s_nop 0
    v_add_f32 v32, v32, v33
    v_add_f32 v34, v34, v35
    s_nop 1
    v_permlane16_swap_b32 v32, v34
    s_nop 0
    v_add_f32 v32, v32, v34
    s_nop 1
    v_add_f32_dpp v32, v32, v32 row_ror:8 row_mask:0xf bank_mask:0xf
    v_cvt_pk_bf16_f32 v32, v32, v32
    s_mov_b64 exec, s[26:27]
    global_store_short v5, v32, s[12:13]{" sc1" if o.outsc1 else ""}""")
    if o.upd:
        e(f"""    s_add_u32 s22, s18, s19
    s_cmp_eq_u32 s22, 0
    s_cbranch_scc0 L_c_noupd
    s_mov_b64 exec, 1
    global_store_dword v6, v25, s[16:17]{" sc1" if o.upd == 2 else ""}
L_c_noupd:""")
    stamp(7)
    if o.stamps:
        e("    s_waitcnt vmcnt(0)")
    stamp(8)
    g.count(9)
    g.fin("C", 10, 1024)
    e(f"""L_end:
    s_endpgm
.section .rodata,"a"
.p2align 6
.amdhsa_kernel {NAME}
  .amdhsa_next_free_vgpr 160
  .amdhsa_next_free_sgpr {100 if (o.stamps or o.hold) else 56}
  .amdhsa_accum_offset 160
  .amdhsa_group_segment_fixed_size 0
  .amdhsa_kernarg_size 56
  .amdhsa_user_sgpr_count 2
  .amdhsa_user_sgpr_kernarg_segment_ptr 1
  .amdhsa_system_sgpr_workgroup_id_x 1
  .amdhsa_float_denorm_mode_32 3
.end_amdhsa_kernel""")
    return "\n".join(g.L) + "\n"

if __name__ == "__main__":
    ap = argparse.ArgumentParser()
    ap.add_argument("-o", required=True)
    ap.add_argument("--stamps", action="store_true")
    ap.add_argument("--nt", type=int, default=1)
    ap.add_argument("--local", type=int, default=1)
    ap.add_argument("--pk", type=int, default=0)
    ap.add_argument("--b0", type=int, default=4)
    ap.add_argument("--ncopy", type=int, default=1)
    ap.add_argument("--pre2", type=int, default=0)
    ap.add_argument("--preh", type=int, default=1)
    ap.add_argument("--n1", type=int, default=3)
    ap.add_argument("--hbar", type=int, default=1)
    ap.add_argument("--upd", type=int, default=1)
    ap.add_argument("--outsc1", type=int, default=0)
    ap.add_argument("--depth", type=int, default=12)
    ap.add_argument("--atom", type=int, default=0)
    ap.add_argument("--hold")
    a = ap.parse_args()
    open(a.o, "w").write(gen(a))
```

```python
import sys, argparse

NAME = "standalone__swiglu_ffn__decode_kernel"
P1 = 0x1000
HR = 0x80000
P2 = 0x100000
TS = 0x400000
SB = 64

class G:
    def __init__(s, o):
        s.L = []; s.o = o; s.role = "A"
    def e(s, t): s.L.append(t)
    def stamp(s, i):
        h = s.o.hold
        a = s.o.amp
        if a and (i == 0 or (int(a[1:]) == i and (a[0] == s.role or (a[0] == "C" and s.role == "H")))):
            s.e(f"    s_memrealtime s[{SB+2*i}:{SB+1+2*i}]")
        elif s.o.stamps or (h and ((h[0] == s.role and int(h[1:]) == i) or (i == 0 and int(h[1:]) == 0))):
            s.e(f"    s_memrealtime s[{SB+2*i}:{SB+1+2*i}]")
    def count(s, i, reg="s33"):
        if s.o.stamps:
            s.e(f"    s_sub_u32 s{SB+2*i}, 0x40000, {reg}")
            s.e(f"    s_mul_i32 s{SB+2*i}, s{SB+2*i}, 100")
            s.e(f"    s_add_u32 s{SB+2*i}, s{SB+2*i}, s{SB}")
    def fin(s, lbl, n, base):
        e = s.e
        a = s.o.amp
        if a:
            k = int(a[1:])
            e("    s_waitcnt lgkmcnt(0)")
            e("    s_mov_b64 exec, -1")
            e("    v_bfe_u32 v2, v0, 6, 2")
            e("    v_lshlrev_b32 v2, 3, v2")
            if lbl == "A":
                e(f"    v_mov_b32 v4, s{SB}")
                e(f"    v_mov_b32 v5, {'s%d' % (SB+2*k) if a[0] == 'A' else 0}")
                e("    ds_write_b64 v2, v[4:5] offset:16384")
                e("    s_waitcnt lgkmcnt(0)")
            def spin(name, reg):
                e(f"L_{name}_{lbl}:")
                e("    s_sleep 2")
                e("    s_memrealtime s[98:99]")
                e("    s_waitcnt lgkmcnt(0)")
                e(f"    s_sub_u32 s98, s98, {reg}")
                e("    s_cmp_lt_i32 s98, 0")
                e(f"    s_cbranch_scc1 L_{name}_{lbl}")
            if lbl in ("B", "C"):
                e(f"    s_add_u32 s96, s{SB}, 1200")
                spin("dly", "s96")
                e("    v_mov_b32 v6, 128")
                e("    s_mov_b64 exec, 1")
                if lbl == "B":
                    e("    ds_read_b64 v[4:5], v2 offset:16384")
                    e("    s_waitcnt lgkmcnt(0)")
                    e("    v_not_b32 v4, v4")
                    e("    global_atomic_umax v6, v4, s[14:15] sc1")
                    if a[0] == "B":
                        e(f"    v_mov_b32 v5, s{SB+2*k}")
                    if a[0] in "AB":
                        e("    global_atomic_umax v6, v5, s[14:15] offset:4 sc1")
                elif a[0] == "C":
                    e(f"    v_mov_b32 v5, s{SB+2*k}")
                    e("    global_atomic_umax v6, v5, s[14:15] offset:4 sc1")
                if lbl == "B":
                    e("    s_sub_u32 s96, s3, s2")
                    e("    s_cmp_eq_u32 s96, 448")
                    e("    s_cbranch_scc0 L_amp_done")
                    e(f"    s_add_u32 s96, s{SB}, 10000")
                    spin("dly2", "s96")
                    e("    global_load_dwordx2 v[4:5], v6, s[14:15] sc1")
                    e("    s_waitcnt vmcnt(0)")
                    e("    v_not_b32 v4, v4")
                    e("    v_sub_u32 v4, v5, v4")
                    e("    s_nop 1")
                    e("    v_readfirstlane_b32 s97, v4")
                    e("    s_nop 1")
                    e("    s_min_u32 s97, s97, 2000")
                    e("    s_mul_i32 s97, s97, 20")
                    e("    s_add_u32 s96, s96, s97")
                    spin("dly3", "s96")
                    e("L_amp_done:")
        if s.o.stamps:
            e("    s_waitcnt lgkmcnt(0)")
            e("    s_mov_b64 exec, -1")
            e("    v_lshrrev_b32 v2, 6, v0")
            e("    v_lshlrev_b32 v2, 6, v2")
            for i in range(n):
                e(f"    v_mov_b32 v3, s{SB+2*i}")
                e(f"    ds_write_b32 v2, v3 offset:{16384+4*i}")
            e("    s_waitcnt lgkmcnt(0)")
            if lbl in ("B", "C"):
                e(f"    s_add_u32 s96, s{SB}, 1000")
                e(f"L_dly_{lbl}:")
                e("    s_sleep 8")
                e("    s_memrealtime s[98:99]")
                e("    s_waitcnt lgkmcnt(0)")
                e("    s_sub_u32 s98, s98, s96")
                e("    s_cmp_lt_i32 s98, 0")
                e(f"    s_cbranch_scc1 L_dly_{lbl}")
                e("    v_and_b32 v4, 15, v0")
                e("    v_lshl_add_u32 v2, v4, 2, v2")
                e("    ds_read_b32 v5, v2 offset:16384")
                e("    ds_read_b32 v6, v2 offset:16128")
                e("    v_bfe_u32 v3, v0, 6, 2")
                e("    v_lshl_add_u32 v3, s2, 2, v3")
                e("    v_lshlrev_b32 v3, 6, v3")
                e("    v_lshl_add_u32 v3, v4, 2, v3")
                e(f"    v_add_u32 v7, {TS + 1024*64}, v3")
                e(f"    v_add_u32 v3, {TS}, v3")
                e("    s_mov_b64 exec, 0xffff")
                e("    s_waitcnt lgkmcnt(0)")
                e("    global_store_dword v7, v5, s[16:17]")
                e("    global_store_dword v3, v6, s[16:17]")
        h = s.o.hold
        if h and h[0] == s.role:
            i = int(h[1:])
            e("    s_waitcnt lgkmcnt(0)")
            e(f"    s_add_u32 s{SB+2*i}, s{SB+2*i}, 3000")
            e(f"L_hold_{lbl}:")
            e("    s_memrealtime s[98:99]")
            e("    s_waitcnt lgkmcnt(0)")
            e(f"    s_sub_u32 s98, s98, s{SB+2*i}")
            e("    s_cmp_lt_i32 s98, 0")
            e(f"    s_cbranch_scc1 L_hold_{lbl}")
        e("    s_endpgm")

def gen(o):
    g = G(o); e = g.e; stamp = g.stamp
    NT = " nt" if o.nt else ""
    if o.stamps:
        e('; GROUPS [("A",0,896,6),("B",1024,1920,9),("H",896,1024,5,4),("C",1920,2048,10)]')
    e(f"""; @launch grid=(256,1,1) block=(512,1,1) lds={16896 if (o.stamps or o.amp) else 16384}
.amdgcn_target "amdgcn-amd-amdhsa--gfx950"
.text
.globl {NAME}
.p2align 8
.type {NAME},@function
{NAME}:""")
    stamp(0)
    e(f"""    s_load_dwordx8 s[4:11], s[0:1], 0
    s_load_dwordx4 s[12:15], s[0:1], 32
    s_load_dwordx2 s[16:17], s[0:1], 48
    v_readfirstlane_b32 s3, v0
    s_cmp_ge_u32 s2, 256
    s_cbranch_scc1 L_end
    s_and_b32 s18, s2, 7                   ; class
    s_lshr_b32 s19, s2, 5
    s_bfe_u32 s21, s2, 0x20003             ; ks
    s_add_u32 s22, s18, 3
    s_and_b32 s22, s22, 7
    s_mov_b32 s26, 0xff00ff00
    s_mov_b32 s27, s26
    s_cmp_eq_u32 s19, s22
    s_cselect_b32 s38, 0x00ff00ff, -1
    s_cselect_b32 s23, 0, s26
    s_cmp_eq_u32 s19, 7
    s_cselect_b32 s38, s23, s38
    s_cselect_b32 s22, s22, s19
    s_mov_b32 s39, s38
    s_mul_i32 s20, s18, 7
    s_add_u32 s20, s20, s22
    s_lshl_b32 s22, s20, 13
    s_lshl_b32 s23, s21, 10
    s_add_u32 s23, s23, s22
    s_add_u32 s23, s23, {P1}
    v_and_b32 v1, 63, v0                   ; lane
    v_bfe_u32 v8, v0, 6, 1                 ; sel
    v_bfe_u32 v7, v0, 7, 1
    v_lshl_add_u32 v14, v8, 12, s23
    v_lshl_add_u32 v14, v7, 9, v14
    v_lshl_add_u32 v14, v1, 4, v14
    s_bitcmp1_b32 s3, 6
    s_cselect_b32 s48, 8, 0
    s_bitcmp1_b32 s38, s48
    s_cselect_b32 s48, -1, 0
    s_mov_b32 s49, 0
    s_lshr_b32 s29, s2, 3                  ; i
    s_cmp_ge_u32 s3, 256
    s_cbranch_scc1 L_upper
    s_getreg_b32 s50, hwreg(HW_REG_XCC_ID, 0, 4)
    s_add_u32 s50, s50, 1
    v_mov_b32 v3, s50
    s_lshl_b32 s22, s18, 2
    s_add_u32 s22, s22, s21
    s_lshl_b32 s22, s22, 2
    v_mov_b32 v9, s22
    s_cmp_eq_u32 s38, 0
    s_cbranch_scc1 L_hjob_lo""")
    e("""    v_and_b32 v2, 0xf0, v0                 ; wv*64+kg*16
    v_lshl_add_u32 v2, s21, 8, v2          ; row0
    v_mul_u32_u24 v4, 7168, v2
    v_and_b32 v5, 7, v0
    v_lshl_add_u32 v4, v5, 4, v4
    v_add_u32 v4, 3584, v4
    v_lshl_add_u32 v4, s20, 7, v4          ; offset
    v_mov_b32 v5, 0
    v_bfe_u32 v6, v0, 2, 2                 ; batch
    v_lshlrev_b32 v6, 11, v6
    v_lshl_add_u32 v6, v2, 1, v6
    s_mov_b32 s24, 14336
    s_mov_b32 s25, 0
    s_sub_u32 s22, s19, s3
    s_cmp_eq_u32 s22, 7
    s_waitcnt lgkmcnt(0)""")
    stamp(1)
    e("""    v_lshl_add_u64 v[10:11], v[4:5], 0, s[6:7]
    s_cbranch_scc0 L_notab
    s_mov_b64 exec, 1
    global_store_dword v9, v3, s[14:15] sc1
L_notab:
    s_mov_b64 exec, s[48:49]
    s_cbranch_execz L_nopre
    global_load_dword v28, v14, s[16:17]
L_nopre:
    s_mov_b64 exec, -1
    global_load_dwordx4 v[16:19], v6, s[4:5]
    global_load_dwordx4 v[20:23], v6, s[4:5] offset:16
    s_mov_b64 exec, s[26:27]
    v_lshl_add_u64 v[10:11], v[4:5], 0, s[8:9]
    s_mov_b64 exec, s[38:39]""")
    W1 = 32
    for p in range(8):
        e(f"    global_load_dwordx4 v[{W1+8*p}:{W1+8*p+3}], v[10:11], off offset:-3584{NT}")
        e(f"    global_load_dwordx4 v[{W1+8*p+4}:{W1+8*p+7}], v[10:11], off offset:3584{NT}")
        if p < 7:
            e("    v_lshl_add_u64 v[10:11], v[10:11], 0, s[24:25]")
    e("    s_mov_b64 exec, -1")
    if o.b0 == 16:
        e("    s_barrier")
    stamp(2)
    def tagsetup():
        e("""    s_add_u32 s28, s28, 1
    s_bitset1_b32 s28, 31                  ; tag
    v_mov_b32 v25, s28""")
    def consts():
        e("""    s_mov_b32 s30, 0x05040100
    s_mov_b32 s31, 0x07060302
    s_mov_b32 s34, 0x07060500
    s_mov_b32 s35, 0x07060501
    s_mov_b32 s36, 0x07060502
    s_mov_b32 s37, 0x07060503""")
    def tabload():
        e("""    s_lshl_b32 s22, s18, 4
    s_load_dwordx4 s[40:43], s[14:15], s22
    s_getreg_b32 s50, hwreg(HW_REG_XCC_ID, 0, 4)
    s_add_u32 s50, s50, 1
    s_mov_b32 s51, s50""")
    def tabcheck():
        e("""    s_xor_b64 s[40:41], s[40:41], s[50:51]
    s_xor_b64 s[42:43], s[42:43], s[50:51]
    s_or_b64 s[40:41], s[40:41], s[42:43]""")
        if not o.local:
            e("    s_cmp_eq_u32 s2, s2")
    def reduce_publish(addr_lds, off, addr_g, far, done):
        e(f"""    ds_read_b128 v[32:35], {addr_lds} offset:{off}
    ds_read_b128 v[36:39], {addr_lds} offset:{off+2048}
    ds_read_b128 v[40:43], {addr_lds} offset:{off+4096}
    ds_read_b128 v[44:47], {addr_lds} offset:{off+6144}""")
        tabcheck()
        e(f"""    s_waitcnt lgkmcnt(2)
    v_pk_add_f32 v[32:33], v[32:33], v[36:37]
    v_pk_add_f32 v[34:35], v[34:35], v[38:39]
    s_waitcnt lgkmcnt(0)
    v_pk_add_f32 v[40:41], v[40:41], v[44:45]
    v_pk_add_f32 v[42:43], v[42:43], v[46:47]
    v_pk_add_f32 v[32:33], v[32:33], v[40:41]
    v_pk_add_f32 v[34:35], v[34:35], v[42:43]
    v_perm_b32 v32, v32, v25, s34
    v_perm_b32 v33, v33, v25, s35
    v_perm_b32 v34, v34, v25, s36
    v_perm_b32 v35, v35, v25, s37
    s_cbranch_scc1 {far}
    global_store_dwordx4 {addr_g}, v[32:35], s[16:17]
{done}:""")
    e("    s_load_dword s28, s[16:17], 0")
    consts()
    e(f"""    v_lshrrev_b32 v3, 6, v0                ; wv
    v_lshlrev_b32 v12, 2, v1
    v_lshl_add_u32 v12, v3, 11, v12
    v_lshlrev_b32 v13, 10, v7
    v_lshl_add_u32 v13, v8, 5, v13
    v_bfe_u32 v8, v0, 1, 4                 ; (l5>>1): (c&3)*4+q
    v_lshl_add_u32 v13, v8, 6, v13
    v_and_b32 v9, 1, v0
    v_lshl_add_u32 v13, v9, 4, v13
    s_waitcnt lgkmcnt(0)""")
    tagsetup()
    ACC = 96; BT = 128
    def perm(blk, c, d):
        sel = "s30" if c % 2 == 0 else "s31"
        r0 = W1 + 4*(8*blk+2*d) + c//2
        r1 = W1 + 4*(8*blk+2*d+1) + c//2
        e(f"    v_perm_b32 v{BT+4*c+d}, v{r1}, v{r0}, {sel}")
    def mfma(blk, c, a=None):
        a = 16 + 4*blk
        cc = "0" if blk == 0 else f"v[{ACC+4*c}:{ACC+4*c+3}]"
        e(f"    v_mfma_f32_16x16x32_bf16 v[{ACC+4*c}:{ACC+4*c+3}], v[{a}:{a+3}], v[{BT+4*c}:{BT+4*c+3}], {cc}")
    def ldswrite(off64):
        for c in range(0, 8, 2):
            if c == 4: e("    s_nop 1")
            if c == 6: e("    s_nop 2")
            e(f"    ds_write2st64_b32 v12, v{ACC+4*c}, v{ACC+4*c+4} offset0:{off64+c} offset1:{off64+c+1}")
    for blk in range(2):
        for d in range(4):
            n = 14 - 8*blk - 2*d
            e(f"    s_waitcnt vmcnt({n})")
            if n == o.b0:
                e("    s_barrier")
            if d < 3:
                for c in range(8): perm(blk, c, d)
            else:
                if blk == 1: stamp(3)
                perm(blk, 0, 3); perm(blk, 1, 3); perm(blk, 2, 3)
                for c in range(8):
                    mfma(blk, c)
                    if c + 3 < 8: perm(blk, c + 3, 3)
        if blk == 0: tabload()
    e("    s_nop 1")
    ldswrite(0)
    e("""    s_mov_b64 exec, s[48:49]
    s_waitcnt lgkmcnt(0)
    s_barrier
    s_cbranch_execz L_pub_done""")
    reduce_publish("v13", 0, "v14", "L_pub_far", "L_pub_done")
    stamp(4)
    e("""    s_cmp_ge_u32 s2, 224
    s_cbranch_scc1 L_hjob_lo2""")
    if o.n1 < 8:
        e("    s_barrier")
    if o.stamps:
        e("    s_cmp_eq_u64 s[40:41], 0")
        e(f"    s_cselect_b32 s{SB+10}, 0, 100")
        e(f"    s_add_u32 s{SB+10}, s{SB+10}, s{SB}")
    g.fin("A", 6, 0)
    e("""L_pub_far:
    global_store_dwordx4 v14, v[32:35], s[16:17] sc1
    s_branch L_pub_done""")
    g.role = "B"
    e(f"""L_upper:
    v_bfe_u32 v3, v0, 6, 2                 ; v
    v_bfe_u32 v2, v0, 3, 2
    v_lshl_add_u32 v2, v3, 2, v2           ; piece
    v_mul_u32_u24 v15, 3584, v2
    v_and_b32 v2, 7, v0
    v_lshl_add_u32 v15, v2, 4, v15
    s_mul_i32 s22, s18, 57344
    s_lshl_b32 s23, s29, 7
    s_add_u32 s22, s22, s23
    s_add_u32 s22, s22, {P2}
    v_add_u32 v15, s22, v15
    s_waitcnt lgkmcnt(0)
    s_load_dword s28, s[16:17], 0
    s_cmp_ge_u32 s2, 224
    s_cbranch_scc1 L_hjob_hi
    v_bfe_u32 v2, v0, 4, 3                 ; 4*(v&1) + kg
    v_lshlrev_b32 v4, 11, v2
    v_lshl_add_u32 v4, v7, 17, v4
    v_and_b32 v5, 15, v0
    v_lshl_add_u32 v4, v5, 4, v4
    s_lshl_b32 s22, s29, 18
    s_lshl_b32 s23, s18, 8
    s_add_u32 s22, s22, s23
    v_add_u32 v16, s22, v4""")
    for k in range(1, 8):
        e(f"    v_add_u32 v{16+k}, {0x4000*k}, v16")
    e(f"""    ; h offset: HR + copy*57344 + (2i + (v>>1))*1024 + (4*(v&1)+kg)*128 + q*32
    v_lshlrev_b32 v26, 7, v2
    v_lshl_add_u32 v26, v7, 10, v26
    v_lshl_add_u32 v26, v5, 3, v26         ; q*32 + r*8
    s_mul_i32 s22, s18, {57344 if o.ncopy == 8 else 0}
    s_lshl_b32 s23, s29, 11
    s_add_u32 s22, s22, s23
    s_add_u32 s22, s22, {HR}
    v_add_u32 v26, s22, v26
    v_lshlrev_b32 v12, 2, v1
    v_lshl_add_u32 v12, v3, 11, v12
    v_lshlrev_b32 v13, 4, v1
    v_lshl_add_u32 v13, v3, 9, v13""")
    consts()
    e("    s_waitcnt lgkmcnt(0)")
    tagsetup()
    e("    s_lshr_b32 s29, s28, 16")
    e("    s_xor_b32 s29, s29, s28")
    e("    v_mov_b32 v64, 0")
    e("    v_mov_b32 v65, 0")
    if o.pre2:
        e("""    s_mov_b32 exec_hi, 0
    global_load_dword v28, v15, s[16:17]
    s_mov_b32 exec_hi, -1""")
    if o.preh:
        e("    global_load_dword v29, v26, s[16:17]")
    e("    s_barrier")
    stamp(1)
    for r in range(o.n1):
        e(f"    global_load_dwordx4 v[{W1+4*r}:{W1+4*r+3}], v{16+r}, s[10:11]{NT}")
    tabload()
    e("""    s_mov_b32 s33, 0x40000
    s_barrier""")
    if o.n1 < 8:
        e("    s_barrier")
    for r in range(o.n1, 8):
        e(f"    global_load_dwordx4 v[{W1+4*r}:{W1+4*r+3}], v{16+r}, s[10:11]{NT}")
    stamp(2)
    HV = 64
    hld = f"    global_atomic_add_x2 v[{HV+2}:{HV+3}], v26, v[{HV}:{HV+1}], s[16:17] sc0" if o.atom else f"    global_load_dwordx2 v[{HV+2}:{HV+3}], v26, s[16:17] sc1"
    nd = 4
    issued = 0
    for d in range(4):
        e(f"    s_waitcnt vmcnt({6 - 2*d + issued})")
        if d == 3: stamp(3)
        if 6 - 2*d == o.pk:
            e(hld); issued = 1
        for c in range(8): perm(0, c, d)
    e(f"""    s_branch L_pollh_chk
L_pollh:
{hld}
    s_sub_u32 s33, s33, 1
    s_cbranch_scc1 L_pollh_done
L_pollh_chk:
    s_waitcnt vmcnt(0)
    v_xor_b32 v8, s28, v{HV+2}
    v_bitop3_b32 v8, v{HV+3}, s29, v8 bitop3:0xbe
    v_and_b32 v8, 0xffff, v8
    v_cmp_ne_u32 vcc, 0, v8
    s_cbranch_vccnz L_pollh
L_pollh_done:""")
    stamp(4)
    e(f"    v_perm_b32 v8, v{HV+3}, v{HV+2}, s31")
    if nd < 4:
        for d in range(nd, 4):
            for c in range(8): perm(0, c, d)
    else:
        e("    s_nop 1")
    for d in range(4):
        e(f"    v_mov_b32_dpp v{16+d}, v8 quad_perm:[{d},{d},{d},{d}] row_mask:0xf bank_mask:0xf")
    e("    s_nop 1")
    for c in range(8): mfma(0, c)
    e("    s_nop 3")
    ldswrite(32)
    e("""    s_mov_b32 exec_hi, 0
    s_waitcnt lgkmcnt(0)
    s_barrier""")
    stamp(5)
    if o.stamps or o.amp == "B5": e("    s_waitcnt lgkmcnt(0)")
    reduce_publish("v13", 8192, "v15", "L_pub2_far", "L_pub2_done")
    stamp(6)
    g.count(7)
    if o.stamps:
        e("    s_cmp_eq_u64 s[40:41], 0")
        e(f"    s_cselect_b32 s{SB+16}, 0, 100")
        e(f"    s_add_u32 s{SB+16}, s{SB+16}, s{SB}")
    g.fin("B", 9, 1024)
    e("""L_pub2_far:
    global_store_dwordx4 v15, v[32:35], s[16:17] sc1
    s_branch L_pub2_done""")
    g.role = "H"
    e("""L_hjob_lo:                                 ; lower waves of a helper with no weights to load
    s_waitcnt lgkmcnt(0)
    s_load_dword s28, s[16:17], 0
    s_cmp_eq_u32 s3, 0
    s_cbranch_scc0 L_notab2
    s_mov_b64 exec, 1
    global_store_dword v9, v3, s[14:15] sc1
    s_mov_b64 exec, -1
L_notab2:
    s_waitcnt lgkmcnt(0)""")
    tagsetup()
    e("""L_hjob_lo2:
    s_mov_b64 exec, -1
    s_cmp_ge_u32 s3, 192
    s_cbranch_scc1 L_end
    s_branch L_hjob
L_hjob_hi:
    v_mov_b32 v6, 0
    global_load_dword v7, v6, s[12:13]
    s_waitcnt lgkmcnt(0)""")
    tagsetup()
    e(f"""    s_cmp_eq_u32 s38, 0
    s_cbranch_scc1 L_hjob
    s_barrier
    s_barrier
L_hjob:
    s_lshr_b32 s22, s3, 6
    s_xor_b32 s22, s22, 4                  ; cgl
    s_mul_i32 s20, s18, 7
    s_add_u32 s20, s20, s22
    s_lshl_b32 s23, s21, 8
    s_lshl_b32 s22, s20, 13
    s_add_u32 s22, s22, s23
    s_add_u32 s22, s22, {P1 + 4096}
    v_lshl_add_u32 v15, v1, 2, s22
    s_lshl_b32 s22, s20, 10
    s_add_u32 s22, s22, s23
    s_add_u32 s22, s22, {HR}
    v_lshl_add_u32 v16, v1, 2, s22""")
    for k in range(1, o.ncopy):
        e(f"    v_add_u32 v{16+k}, {57344*k}, v16")
    e("""    v_and_b32 v26, 3, v0
    v_lshlrev_b32 v26, 3, v26
    v_lshrrev_b32 v26, v26, v25
    v_and_b32 v27, 1, v0
    v_lshrrev_b32 v28, 16, v25
    v_mul_u32_u24 v27, v27, v28
    v_xor_b32 v27, v27, v25
    s_mov_b32 s30, 0x05040100
    s_mov_b32 s33, 0x40000""")
    stamp(1)
    e("L_poll1:")
    for i in range(8):
        e(f"    global_load_dword v{48+i}, v15, s[16:17] offset:{-4096+1024*i} sc1")
    e("""    s_sub_u32 s33, s33, 1
    s_cbranch_scc1 L_poll1_done""")
    for i in range(8):
        if i % 2 == 0:
            e(f"    s_waitcnt vmcnt({6-i})")
        if i == 0:
            e("    v_xor_b32 v56, v48, v26")
        else:
            e(f"    v_bitop3_b32 v56, v{48+i}, v26, v56 bitop3:0xbe")
    e("""    v_and_b32 v56, 0xff, v56
    v_cmp_ne_u32 vcc, 0, v56
    s_cbranch_vccnz L_poll1
L_poll1_done:
    s_waitcnt vmcnt(0)""")
    stamp(2)
    e("""    v_pk_add_f32 v[48:49], v[48:49], v[50:51]
    v_pk_add_f32 v[52:53], v[52:53], v[54:55]
    v_add_f32 v48, v48, v49                ; g
    v_add_f32 v52, v52, v53                ; u
    v_cvt_pk_bf16_f32 v49, v48, v52
    v_lshlrev_b32 v48, 16, v49             ; bf16(g)
    v_mul_f32 v50, 0xbfb8aa3b, v48
    v_exp_f32 v50, v50
    v_and_b32 v52, 0xffff0000, v49         ; bf16(u)
    v_add_f32 v50, 1.0, v50
    v_rcp_f32 v50, v50
    s_nop 0
    v_mul_f32 v50, v48, v50                ; silu
    v_cvt_pk_bf16_f32 v50, v50, v50
    v_lshlrev_b32 v50, 16, v50
    v_mul_f32 v50, v50, v52
    v_cvt_pk_bf16_f32 v50, v50, v50
    v_perm_b32 v50, v50, v27, s30""")
    if o.hbar:
        e("    s_barrier")
    for k in range(o.ncopy):
        e(f"    global_store_dword v{16+k}, v50, s[16:17] sc1")
    stamp(3)
    g.count(4)
    e("""    s_cmp_ge_u32 s3, 256
    s_cbranch_scc1 L_cjob""")
    g.fin("H", 5, 2048)
    g.role = "C"
    R = 32
    e(f"""L_cjob:
    s_bfe_u32 s22, s3, 0x20006
    s_lshl_b32 s23, s21, 2
    s_add_u32 s19, s22, s23                ; piece
    s_mul_i32 s22, s19, 3584
    s_mul_i32 s23, s18, 57344
    s_add_u32 s22, s22, s23
    s_add_u32 s22, s22, {P2}
    v_lshl_add_u32 v11, v1, 4, s22
    s_and_b32 s22, s19, 1
    s_lshl_b32 s22, s22, 12
    s_lshl_b32 s23, s18, 8
    s_add_u32 s22, s22, s23
    s_and_b32 s23, s19, 14
    s_add_u32 s22, s22, s23
    v_bfe_u32 v2, v0, 2, 1
    v_lshl_add_u32 v5, v2, 11, s22
    v_and_b32 v2, 3, v0
    v_lshl_add_u32 v5, v2, 6, v5
    v_bfe_u32 v2, v0, 4, 1
    v_lshl_add_u32 v5, v2, 5, v5
    v_bfe_u32 v2, v0, 5, 1
    v_lshl_add_u32 v5, v2, 4, v5
    v_mov_b32 v6, 0
    s_lshr_b32 s4, s28, 8
    s_lshr_b32 s5, s28, 16
    s_lshr_b32 s6, s28, 24
    v_mov_b32 v{R+12}, 0
    v_mov_b32 v{R+13}, 0
    v_mov_b32 v{R+14}, 0
    v_mov_b32 v{R+15}, 0
    s_mov_b32 s33, 0x40000
    s_mov_b32 s26, 0x00ff00ff
    s_mov_b32 s27, s26""")
    stamp(5)
    e("L_poll2:")
    for t in range(3):
        e(f"    global_load_dwordx4 v[{R+4*t}:{R+3+4*t}], v11, s[16:17] offset:{1024*t} sc1")
    e(f"""    s_mov_b32 exec_hi, 0
    global_load_dwordx4 v[{R+12}:{R+15}], v11, s[16:17] offset:3072 sc1
    s_mov_b32 exec_hi, -1
    s_sub_u32 s33, s33, 1
    s_cbranch_scc1 L_poll2_done""")
    sr = ["s28", "s4", "s5", "s6"]
    for t in range(4):
        e(f"    s_waitcnt vmcnt({3-t})")
        if t == 3:
            e("    s_mov_b32 exec_hi, 0")
        for c in range(4):
            if t == 0 and c == 0:
                e(f"    v_xor_b32 v8, s28, v{R}")
            else:
                e(f"    v_bitop3_b32 v8, v{R+4*t+c}, {sr[c]}, v8 bitop3:0xbe")
    e("""    s_mov_b32 exec_hi, -1
    v_and_b32 v8, 0xff, v8
    v_cmp_ne_u32 vcc, 0, v8
    s_cbranch_vccnz L_poll2
L_poll2_done:
    s_waitcnt vmcnt(0)""")
    stamp(6)
    e(f"""    v_pk_add_f32 v[{R}:{R+1}], v[{R}:{R+1}], v[{R+4}:{R+5}]
    v_pk_add_f32 v[{R+2}:{R+3}], v[{R+2}:{R+3}], v[{R+6}:{R+7}]
    v_pk_add_f32 v[{R+8}:{R+9}], v[{R+8}:{R+9}], v[{R+12}:{R+13}]
    v_pk_add_f32 v[{R+10}:{R+11}], v[{R+10}:{R+11}], v[{R+14}:{R+15}]
    v_pk_add_f32 v[32:33], v[{R}:{R+1}], v[{R+8}:{R+9}]
    v_pk_add_f32 v[34:35], v[{R+2}:{R+3}], v[{R+10}:{R+11}]
    s_nop 0
    v_permlane32_swap_b32 v32, v33
    v_permlane32_swap_b32 v34, v35
    s_nop 0
    v_add_f32 v32, v32, v33
    v_add_f32 v34, v34, v35
    s_nop 1
    v_permlane16_swap_b32 v32, v34
    s_nop 0
    v_add_f32 v32, v32, v34
    s_nop 1
    v_add_f32_dpp v32, v32, v32 row_ror:8 row_mask:0xf bank_mask:0xf
    v_cvt_pk_bf16_f32 v32, v32, v32
    s_mov_b64 exec, s[26:27]
    global_store_short v5, v32, s[12:13]{" sc1" if o.outsc1 else ""}""")
    if o.upd:
        e(f"""    s_add_u32 s22, s18, s19
    s_cmp_eq_u32 s22, 0
    s_cbranch_scc0 L_c_noupd
    s_mov_b64 exec, 1
    global_store_dword v6, v25, s[16:17]{" sc1" if o.upd == 2 else ""}
L_c_noupd:""")
    stamp(7)
    if o.stamps:
        e("    s_waitcnt vmcnt(0)")
    stamp(8)
    g.count(9)
    g.fin("C", 10, 1024)
    e(f"""L_end:
    s_endpgm
.section .rodata,"a"
.p2align 6
.amdhsa_kernel {NAME}
  .amdhsa_next_free_vgpr 160
  .amdhsa_next_free_sgpr {100 if (o.stamps or o.hold or o.amp) else 56}
  .amdhsa_accum_offset 160
  .amdhsa_group_segment_fixed_size 0
  .amdhsa_kernarg_size 56
  .amdhsa_user_sgpr_count 2
  .amdhsa_user_sgpr_kernarg_segment_ptr 1
  .amdhsa_system_sgpr_workgroup_id_x 1
  .amdhsa_float_denorm_mode_32 3
.end_amdhsa_kernel""")
    return "\n".join(g.L) + "\n"

if __name__ == "__main__":
    ap = argparse.ArgumentParser()
    ap.add_argument("-o", required=True)
    ap.add_argument("--stamps", action="store_true")
    ap.add_argument("--nt", type=int, default=1)
    ap.add_argument("--local", type=int, default=1)
    ap.add_argument("--pk", type=int, default=0)
    ap.add_argument("--b0", type=int, default=4)
    ap.add_argument("--ncopy", type=int, default=1)
    ap.add_argument("--pre2", type=int, default=0)
    ap.add_argument("--preh", type=int, default=0)
    ap.add_argument("--n1", type=int, default=3)
    ap.add_argument("--hbar", type=int, default=1)
    ap.add_argument("--upd", type=int, default=1)
    ap.add_argument("--outsc1", type=int, default=0)
    ap.add_argument("--depth", type=int, default=12)
    ap.add_argument("--atom", type=int, default=1)
    ap.add_argument("--amp")
    ap.add_argument("--hold")
    a = ap.parse_args()
    open(a.o, "w").write(gen(a))
```

```python
import sys, argparse

NAME = "standalone__swiglu_ffn__decode_kernel"
P1 = 0x1000
HR = 0x80000
P2 = 0x100000
TS = 0x400000
SB = 64

class G:
    def __init__(s, o):
        s.L = []; s.o = o; s.role = "A"
    def e(s, t): s.L.append(t)
    def stamp(s, i):
        h = s.o.hold; a = s.o.amp
        if (a and (i == 0 or (int(a[1:]) == i and a[0] == s.role))) or s.o.stamps or (h and i == 0):
            s.e(f"    s_memrealtime s[{SB+2*i}:{SB+1+2*i}]")
            return True
        return False
    def count(s, i, reg="s33"):
        if s.o.stamps:
            s.e(f"    s_sub_u32 s{SB+2*i}, 0x40000, {reg}")
            s.e(f"    s_mul_i32 s{SB+2*i}, s{SB+2*i}, 100")
            s.e(f"    s_add_u32 s{SB+2*i}, s{SB+2*i}, s{SB}")
    def flag(s, i):
        if s.o.stamps:
            s.e("    s_cmp_eq_u64 s[40:41], 0")
            s.e(f"    s_cselect_b32 s{SB+2*i}, 0, 100")
            s.e(f"    s_add_u32 s{SB+2*i}, s{SB+2*i}, s{SB}")
    def fin(s, lbl, n):
        e = s.e; a = s.o.amp
        def spin(name, reg):
            e(f"L_{name}_{lbl}:")
            e("    s_sleep 2")
            e("    s_memrealtime s[98:99]")
            e("    s_waitcnt lgkmcnt(0)")
            e(f"    s_sub_u32 s98, s98, {reg}")
            e("    s_cmp_lt_i32 s98, 0")
            e(f"    s_cbranch_scc1 L_{name}_{lbl}")
        if a:
            k = int(a[1:])
            e("    s_waitcnt lgkmcnt(0)")
            e(f"    s_add_u32 s96, s{SB}, 1200")
            spin("dly", "s96")
            e("    s_mov_b64 exec, 1")
            e("    v_mov_b32 v6, 192")
            e(f"    v_not_b32 v4, s{SB}")
            e("    global_atomic_umax v6, v4, s[14:15] sc1")
            if a[0] == lbl:
                e(f"    v_mov_b32 v5, s{SB+2*k}")
                e("    global_atomic_umax v6, v5, s[14:15] offset:4 sc1")
            if lbl == "A":
                e("    s_add_u32 s96, s3, s2")
                e("    s_cmp_eq_u32 s96, 0")
                e("    s_cbranch_scc0 L_amp_done")
                e(f"    s_add_u32 s96, s{SB}, 10000")
                spin("dly2", "s96")
                e("    global_load_dwordx2 v[4:5], v6, s[14:15] sc1")
                e("    s_waitcnt vmcnt(0)")
                e("    v_not_b32 v4, v4")
                e("    v_sub_u32 v4, v5, v4")
                e("    s_nop 1")
                e("    v_readfirstlane_b32 s97, v4")
                e("    s_nop 1")
                e("    s_min_u32 s97, s97, 2000")
                e("    s_mul_i32 s97, s97, 20")
                e("    s_add_u32 s96, s96, s97")
                spin("dly3", "s96")
                e("L_amp_done:")
        if s.o.stamps:
            e("    s_waitcnt lgkmcnt(0)")
            e(f"    s_add_u32 s96, s{SB}, 1000")
            spin("sdly", "s96")
            e("    s_mov_b64 exec, 1")
            e("    s_lshl_b32 s96, s2, 8")
            e("    s_add_u32 s96, s96, s3")
            e(f"    s_add_u32 s96, s96, {TS}")
            e("    v_mov_b32 v2, s96")
            for i in range(n):
                e(f"    v_mov_b32 v3, s{SB+2*i}")
                e(f"    global_store_dword v2, v3, s[16:17] offset:{4*i}")
        if s.o.hold and lbl == "A":
            e("    s_waitcnt lgkmcnt(0)")
            e(f"    s_add_u32 s96, s{SB}, 3000")
            spin("hold", "s96")
        e("    s_endpgm")

def gen(o):
    g = G(o); e = g.e; stamp = g.stamp
    NT = " nt" if o.nt else ""
    diag = o.stamps or o.amp or o.hold
    W1 = 32; ACC = 96; BT = 128; WD = 160; WA = 192
    sched = [int(t) for t in o.sched.split(",")] if o.sched else []
    n1 = len(sched)
    if o.stamps:
        e('; GROUPS [("A",0,896,11),("C",896,1024,11)]')
    e(f"""; @launch grid=(256,1,1) block=(256,1,1) lds=16384
.amdgcn_target "amdgcn-amd-amdhsa--gfx950"
.text
.globl {NAME}
.p2align 8
.type {NAME},@function
{NAME}:""")
    stamp(0)
    e(f"""    s_load_dwordx8 s[4:11], s[0:1], 0
    s_load_dwordx4 s[12:15], s[0:1], 32
    s_load_dwordx2 s[16:17], s[0:1], 48
    v_readfirstlane_b32 s3, v0
    s_cmp_ge_u32 s2, 256
    s_cbranch_scc1 L_end
    s_and_b32 s18, s2, 7                   ; class
    s_lshr_b32 s19, s2, 5
    s_bfe_u32 s21, s2, 0x20003             ; ks
    s_add_u32 s22, s18, 3
    s_and_b32 s22, s22, 7
    s_mov_b32 s26, 0xff00ff00
    s_mov_b32 s27, s26
    s_cmp_eq_u32 s19, s22
    s_cselect_b32 s38, 0x00ff00ff, -1
    s_cselect_b32 s23, 0, s26
    s_cmp_eq_u32 s19, 7
    s_cselect_b32 s38, s23, s38
    s_cselect_b32 s22, s22, s19
    s_mov_b32 s39, s38
    s_mul_i32 s20, s18, 7
    s_add_u32 s20, s20, s22
    v_and_b32 v2, 0xf0, v0                 ; wv*64+kg*16
    v_lshl_add_u32 v2, s21, 8, v2          ; row0
    v_mul_u32_u24 v4, 7168, v2
    v_and_b32 v5, 7, v0
    v_lshl_add_u32 v4, v5, 4, v4
    v_add_u32 v4, 3584, v4
    v_lshl_add_u32 v4, s20, 7, v4
    v_mov_b32 v5, 0
    s_mov_b32 s24, 14336
    s_mov_b32 s25, 0
    v_bfe_u32 v6, v0, 2, 2                 ; batch
    v_lshlrev_b32 v6, 11, v6
    v_lshl_add_u32 v6, v2, 1, v6
    v_and_b32 v2, 3, v0
    v_lshlrev_b32 v203, 3, v2
    v_add_u32 v6, v203, v6
    s_lshl_b32 s22, s20, 13
    s_lshl_b32 s23, s21, 10
    s_add_u32 s23, s23, s22
    s_add_u32 s23, s23, {P1}
    v_and_b32 v1, 63, v0                   ; lane
    v_bfe_u32 v8, v0, 6, 1                 ; sel
    v_lshrrev_b32 v7, 7, v0
    v_lshl_add_u32 v14, v8, 12, s23
    v_lshl_add_u32 v14, v7, 9, v14
    v_lshl_add_u32 v14, v1, 4, v14
    s_getreg_b32 s50, hwreg(HW_REG_XCC_ID, 0, 4)
    s_add_u32 s50, s50, 1
    s_mov_b32 s51, s50
    s_lshl_b32 s22, s18, 2
    s_add_u32 s22, s22, s21
    s_lshl_b32 s22, s22, 2
    v_mov_b32 v9, s22
    v_mov_b32 v3, s50
    s_cmp_lt_u32 s19, 7
    s_waitcnt lgkmcnt(0)""")
    stamp(1)
    e("""    v_lshl_add_u64 v[10:11], v[4:5], 0, s[6:7]
    s_cbranch_scc1 L_stream
    s_cmp_eq_u32 s3, 0
    s_cbranch_scc0 L_notab
    s_mov_b64 exec, 1
    global_store_dword v9, v3, s[14:15] sc1
    s_mov_b64 exec, -1
L_notab:
    s_cmp_eq_u32 s38, 0
    s_cbranch_scc1 L_hidle
L_stream:
    s_mov_b64 exec, s[26:27]
    v_lshl_add_u64 v[10:11], v[4:5], 0, s[8:9]""")
    for p in range(8):
        if p == o.xp:
            e("""    s_mov_b64 exec, -1
    global_load_dwordx2 v[26:27], v6, s[4:5]""")
        if p == o.xp or p == 0:
            e("    s_mov_b64 exec, s[38:39]")
        e(f"    global_load_dwordx4 v[{W1+8*p}:{W1+8*p+3}], v[10:11], off offset:-3584{NT}")
        e(f"    global_load_dwordx4 v[{W1+8*p+4}:{W1+8*p+7}], v[10:11], off offset:3584{NT}")
        if p == o.pp:
            e("""    s_mov_b32 exec_lo, -1
    s_mov_b32 exec_hi, 0
    global_load_dword v24, v14, s[16:17]""")
            if p < 7 and p + 1 != o.xp: e("    s_mov_b64 exec, s[38:39]")
            if p < 7 and p + 1 == o.xp: e("    s_mov_b64 exec, -1")
        if p < 7:
            e("    v_lshl_add_u64 v[10:11], v[10:11], 0, s[24:25]")
    e("    s_mov_b64 exec, -1")
    stamp(2)
    def tagsetup():
        e("""    s_add_u32 s28, s28, 1
    s_bitset1_b32 s28, 31
    s_and_b32 s52, s28, 0xff
    s_mul_i32 s52, s52, 0x01010100
    s_xor_b32 s52, s52, s28
    v_lshrrev_b32 v25, v203, s52""")
    def tabcheck():
        e("""    s_xor_b64 s[40:41], s[40:41], s[50:51]
    s_xor_b64 s[42:43], s[42:43], s[50:51]
    s_or_b64 s[40:41], s[40:41], s[42:43]""")
        if not o.local:
            e("    s_or_b32 s40, s40, 1")
    def reduce_publish(addr_lds, off, addr_g, far, done):
        e(f"""    ds_read_b128 v[32:35], {addr_lds} offset:{off}
    ds_read_b128 v[36:39], {addr_lds} offset:{off+2048}
    ds_read_b128 v[40:43], {addr_lds} offset:{off+4096}
    ds_read_b128 v[44:47], {addr_lds} offset:{off+6144}
    s_waitcnt lgkmcnt(2)
    v_pk_add_f32 v[32:33], v[32:33], v[36:37]
    v_pk_add_f32 v[34:35], v[34:35], v[38:39]
    s_waitcnt lgkmcnt(1)
    v_pk_add_f32 v[32:33], v[32:33], v[40:41]
    v_pk_add_f32 v[34:35], v[34:35], v[42:43]
    s_waitcnt lgkmcnt(0)
    v_pk_add_f32 v[32:33], v[32:33], v[44:45]
    v_pk_add_f32 v[34:35], v[34:35], v[46:47]
    v_perm_b32 v32, v32, v25, s34
    s_cbranch_scc1 {far}
    global_store_dwordx4 {addr_g}, v[32:35], s[16:17]
{done}:""")
    e(f"""    s_load_dword s28, s[16:17], 0
    s_mov_b32 s34, 0x07060500
    s_bitcmp1_b32 s3, 6
    s_cselect_b32 s48, 8, 0
    s_bitcmp1_b32 s38, s48
    s_cselect_b32 s48, -1, 0
    s_mov_b32 s49, 0
    s_mov_b32 s30, 0x0c0c0100
    s_mov_b32 s31, 0x0c0c0302
    s_mov_b32 vcc_lo, 0x33333333
    s_mov_b32 vcc_hi, 0x33333333
    v_and_b32 v9, 1, v0
    v_lshlrev_b32 v9, 4, v9
    v_alignbit_b32 v2, s30, s30, v9
    v_alignbit_b32 v3, s31, s31, v9
    v_mov_b32 v9, 0x0c0c0c0c
    v_cndmask_b32 v28, v9, v2, vcc
    v_cndmask_b32 v29, v2, v9, vcc
    v_cndmask_b32 v30, v9, v3, vcc
    v_cndmask_b32 v31, v3, v9, vcc
    v_bfe_u32 v9, v0, 4, 2
    v_lshlrev_b32 v9, 2, v9
    v_xor_b32 v9, v9, v1
    v_lshlrev_b32 v12, 4, v9
    v_lshrrev_b32 v3, 6, v0                ; wv
    v_lshl_add_u32 v12, v3, 11, v12
    v_lshl_add_u32 v8, v8, 1, v7
    v_bfe_u32 v9, v0, 1, 2
    v_xor_b32 v8, v8, v9
    v_bfe_u32 v9, v0, 1, 3
    v_lshlrev_b32 v13, 8, v9
    v_lshl_add_u32 v13, v8, 6, v13
    v_and_b32 v9, 1, v0
    v_lshl_add_u32 v13, v9, 5, v13
    v_bfe_u32 v9, v0, 4, 1
    v_lshl_add_u32 v13, v9, 4, v13""")
    after_x = 16 - 2*o.xp + (1 if o.pp >= o.xp else 0)
    def after_row(r): return (15 - r) + (1 if r < 2*o.xp else 0) + (1 if r <= 2*o.pp + 1 else 0)
    e(f"    s_waitcnt vmcnt({after_x})")
    for d in range(8):
        e(f"    v_mov_b32_dpp v{16+d}, v{26+d%2} quad_perm:[{d//2},{d//2},{d//2},{d//2}] row_mask:0xf bank_mask:0xf")
    for r in range(16):
        for t in range(2):
            e(f"    v_perm_b32 v{BT+2*r+t}, v{16+r//2}, v{16+r//2}, v{28+2*(r%2)+t}")
    e("""    s_cmp_ge_u32 s2, 224
    s_cbranch_scc1 L_helper""")
    def wdload(k):
        e(f"    global_load_dwordx4 v[{WD+4*k}:{WD+4*k+3}], v{WA+k//4}, s[10:11] offset:{2048*(k%4)-4096}{NT}")
    def phase1(worker, far, done):
        nw = 0
        for r in range(16):
            e(f"    s_waitcnt vmcnt({after_row(r) + nw})")
            if r == 15: stamp(3)
            if worker and r < 15:
                while nw < n1 and sched[nw] == r:
                    wdload(nw); nw += 1
            for h in range(2):
                cc = "0" if r == 0 else f"v[{ACC+4*h}:{ACC+4*h+3}]"
                e(f"    v_mfma_f32_16x16x16_bf16 v[{ACC+4*h}:{ACC+4*h+3}], v[{BT+2*r}:{BT+2*r+1}], v[{W1+4*r+2*h}:{W1+4*r+2*h+1}], {cc}")
            if r == 7:
                e("""    s_waitcnt lgkmcnt(0)
    s_lshl_b32 s22, s18, 4
    s_load_dwordx4 s[40:43], s[14:15], s22""")
                tagsetup()
            if r == 13:
                e("    s_waitcnt lgkmcnt(0)")
                tabcheck()
        k15 = 0
        if worker:
            while nw < n1:
                wdload(nw); nw += 1; k15 += 1
        e(f"""    s_nop {6 - k15}
    ds_write_b128 v12, v[{ACC}:{ACC+3}]
    ds_write_b128 v12, v[{ACC+4}:{ACC+7}] offset:1024
    s_mov_b64 exec, s[48:49]
    s_waitcnt lgkmcnt(0)
    s_barrier
    s_cbranch_execz {done}""")
        reduce_publish("v13", 0, "v14", far, done)
        e("    s_mov_b64 exec, -1")
    e(f"""    s_lshr_b32 s19, s2, 3                  ; i
    v_bfe_u32 v2, v0, 4, 2                 ; kg
    v_lshlrev_b32 v4, 13, v2
    v_lshl_add_u32 v4, v3, 16, v4
    v_and_b32 v5, 15, v0
    v_lshl_add_u32 v4, v5, 4, v4
    s_lshl_b32 s22, s19, 18
    s_lshl_b32 s23, s18, 8
    s_add_u32 s22, s22, s23
    s_add_u32 s22, s22, 4096
    v_add_u32 v{WA}, s22, v4
    v_add_u32 v{WA+1}, 0x8000, v{WA}
    v_bfe_u32 v2, v0, 3, 2
    v_lshl_add_u32 v2, v3, 2, v2           ; piece
    v_mul_u32_u24 v15, 3584, v2
    v_and_b32 v2, 7, v0
    v_lshl_add_u32 v15, v2, 4, v15
    s_mul_i32 s22, s18, 57344
    s_lshl_b32 s23, s19, 7
    s_add_u32 s22, s22, s23
    s_add_u32 s22, s22, {P2}
    v_add_u32 v15, s22, v15
    s_lshl_b32 s22, s19, 11
    s_add_u32 s22, s22, {HR}
    v_lshl_add_u32 v196, v0, 3, s22
    v_lshlrev_b32 v197, 2, v1
    v_lshl_add_u32 v197, v3, 11, v197
    v_lshlrev_b32 v202, 4, v1
    v_lshl_add_u32 v202, v3, 9, v202
    v_mov_b32 v198, 0
    v_mov_b32 v199, 0
    s_mov_b32 s30, 0x05040100
    s_mov_b32 s31, 0x07060302
    s_mov_b32 s33, 0x40000""")
    phase1(True, "L_pub_far", "L_pub_done")
    stamp(4)
    if o.pbar: e("    s_barrier")
    for k in range(n1, 8): wdload(k)
    e("    s_lshr_b32 s29, s52, 16")
    def hld():
        if o.atom:
            e("    global_atomic_add_x2 v[200:201], v196, v[198:199], s[16:17] sc0")
        else:
            e("    global_load_dwordx2 v[200:201], v196, s[16:17] sc1")
    issued = 0
    for d in range(4):
        e(f"    s_waitcnt vmcnt({6 - 2*d + issued})")
        if d == 3: stamp(5)
        if 6 - 2*d == o.pk:
            hld(); issued = 1
        for c in range(8):
            e(f"    v_perm_b32 v{BT+4*c+d}, v{WD+4*(2*d+1)+c//2}, v{WD+4*(2*d)+c//2}, {'s30' if c % 2 == 0 else 's31'}")
    e("""L_pollh:
    s_waitcnt vmcnt(0)
    v_xor_b32 v8, s52, v200
    v_bitop3_b32 v8, v201, s29, v8 bitop3:0xbe
    v_perm_b32 v9, v201, v200, s31
    v_and_b32 v8, 0xffff, v8
    v_cmp_ne_u32 vcc, 0, v8
    s_cbranch_vccz L_pollh_done""")
    hld()
    e("""    s_sub_u32 s33, s33, 1
    s_cbranch_scc0 L_pollh
L_pollh_done:""")
    stamp(6)
    for d in range(4):
        e(f"    v_mov_b32_dpp v{16+d}, v9 quad_perm:[{d},{d},{d},{d}] row_mask:0xf bank_mask:0xf")
    e("    s_nop 1")
    for c in range(8):
        e(f"    v_mfma_f32_16x16x32_bf16 v[{ACC+4*c}:{ACC+4*c+3}], v[16:19], v[{BT+4*c}:{BT+4*c+3}], 0")
    def dsw(c):
        e(f"    ds_write2st64_b32 v197, v{ACC+4*c}, v{ACC+4*c+4} offset0:{32+c} offset1:{33+c}")
    e("    s_cmp_lg_u64 s[40:41], 0")
    e("    s_nop 0")
    dsw(0)
    e("    s_nop 0")
    dsw(2)
    e("    s_nop 0")
    dsw(4)
    e("    s_nop 0")
    dsw(6)
    e("""    s_mov_b32 exec_hi, 0
    s_waitcnt lgkmcnt(0)
    s_barrier""")
    if stamp(7): e("    s_waitcnt lgkmcnt(0)")
    reduce_publish("v202", 8192, "v15", "L_pub2_far", "L_pub2_done")
    stamp(8)
    g.count(9)
    g.flag(10)
    g.fin("A", 11)
    e("""L_pub_far:
    global_store_dwordx4 v14, v[32:35], s[16:17] sc1
    s_branch L_pub_done
L_pub2_far:
    global_store_dwordx4 v15, v[32:35], s[16:17] sc1
    s_branch L_pub2_done
L_hpub_far:
    global_store_dwordx4 v14, v[32:35], s[16:17] sc1
    s_branch L_hpub_done""")
    g.role = "C"
    R = 160
    def hsetup():
        e(f"""    s_lshr_b32 s19, s3, 6
    s_lshl_b32 s22, s21, 2
    s_add_u32 s19, s19, s22                ; job
    s_mul_i32 s44, s18, 14
    s_add_u32 s44, s44, s19
    s_lshr_b32 s22, s44, 1
    s_lshl_b32 s22, s22, 13
    s_and_b32 s23, s44, 1
    s_lshl_b32 s23, s23, 9
    s_add_u32 s22, s22, s23
    s_add_u32 s22, s22, {P1 + 4096}
    v_lshl_add_u32 v192, v1, 3, s22
    s_lshl_b32 s22, s44, 9
    s_add_u32 s22, s22, {HR}
    v_lshl_add_u32 v193, v1, 3, s22        ; h offset
    v_bfe_u32 v4, v0, 1, 2
    v_lshlrev_b32 v194, 3, v4
    v_and_b32 v4, 1, v0
    v_sub_u32 v4, 1, v4
    v_mul_u32_u24 v195, 0xff, v4
    s_mul_i32 s22, s19, 3584
    s_mul_i32 s23, s18, 57344
    s_add_u32 s22, s22, s23
    s_add_u32 s22, s22, {P2}
    v_lshl_add_u32 v196, v1, 4, s22
    s_and_b32 s22, s19, 1
    s_lshl_b32 s22, s22, 12
    s_lshl_b32 s23, s18, 8
    s_add_u32 s22, s22, s23
    s_and_b32 s23, s19, 14
    s_add_u32 s22, s22, s23
    v_bfe_u32 v2, v0, 2, 1
    v_lshl_add_u32 v197, v2, 11, s22
    v_and_b32 v2, 3, v0
    v_lshl_add_u32 v197, v2, 6, v197
    v_bfe_u32 v2, v0, 4, 1
    v_lshl_add_u32 v197, v2, 5, v197
    v_bfe_u32 v2, v0, 5, 1
    v_lshl_add_u32 v197, v2, 4, v197
    v_mov_b32 v{R+13}, 0
    v_mov_b32 v{R+14}, 0
    v_mov_b32 v{R+15}, 0
    s_mov_b32 s30, 0x05040100
    s_mov_b32 s31, 0x07060302
    s_mov_b32 s33, 0x40000
    s_mov_b32 s26, 0x00ff00ff
    s_mov_b32 s27, s26""")
    e("""L_hidle:
    s_load_dword s28, s[16:17], 0""")
    if diag:
        e(f"    s_mov_b32 s{SB+4}, s{SB}")
        e(f"    s_mov_b32 s{SB+6}, s{SB}")
    hsetup()
    e("    s_waitcnt lgkmcnt(0)")
    tagsetup()
    e("""    s_branch L_hjob
L_helper:""")
    hsetup()
    phase1(False, "L_hpub_far", "L_hpub_done")
    e("""L_hjob:
    v_lshrrev_b32 v194, v194, s52
    v_mov_b32 v198, s52""")
    if o.hd:
        for i in range(8):
            e(f"    v_not_b32 v{48+2*i}, v194")
    e("    s_cmp_ge_u32 s19, 14")
    stamp(4)
    if diag:
        e(f"    s_mov_b32 s{SB+10}, s{SB}")
    e("""    s_cbranch_scc1 L_hbar
L_poll1:""")
    for i in range(8):
        e(f"    global_load_dwordx2 v[{48+2*i}:{49+2*i}], v192, s[16:17] offset:{-4096+1024*i} sc1")
    e("""    s_sub_u32 s33, s33, 1
    s_cbranch_scc1 L_poll1_done""")
    if o.hd:
        e(f"    s_waitcnt vmcnt({8*o.hd})")
    for i in range(4):
        if not o.hd:
            e(f"    s_waitcnt vmcnt({6-2*i})")
        e(f"    v_bitop3_b32 v{72+i}, v194, v{48+4*i}, v{50+4*i} bitop3:0x7e")
        if not o.hd:
            e(f"    v_pk_add_f32 v[{76+2*i}:{77+2*i}], v[{48+4*i}:{49+4*i}], v[{50+4*i}:{51+4*i}]")
            if i == 1:
                e("    v_pk_add_f32 v[64:65], v[76:77], v[78:79]")
        if i == 2:
            e("    v_or3_b32 v72, v72, v73, v74")
    e("""    v_bitop3_b32 v72, v72, v75, v195 bitop3:0xa8
    v_cmp_ne_u32 vcc, 0, v72""")
    if not o.hd:
        e("    v_pk_add_f32 v[66:67], v[80:81], v[82:83]")
    e("""    s_cbranch_vccnz L_poll1
L_poll1_done:""")
    if o.hd:
        for i in range(4):
            e(f"    v_pk_add_f32 v[{76+2*i}:{77+2*i}], v[{48+4*i}:{49+4*i}], v[{50+4*i}:{51+4*i}]")
        e("    v_pk_add_f32 v[64:65], v[76:77], v[78:79]")
        e("    v_pk_add_f32 v[66:67], v[80:81], v[82:83]")
    stamp(5)
    e("""    v_cvt_pk_bf16_f32 v68, v64, v65
    v_cvt_pk_bf16_f32 v69, v66, v67
    v_lshlrev_b32 v64, 16, v68
    v_and_b32 v65, 0xffff0000, v68
    v_mul_f32 v70, 0xbfb8aa3b, v64
    v_mul_f32 v71, 0xbfb8aa3b, v65
    v_exp_f32 v70, v70
    v_exp_f32 v71, v71
    v_lshlrev_b32 v66, 16, v69
    v_add_f32 v70, 1.0, v70
    v_add_f32 v71, 1.0, v71
    v_rcp_f32 v70, v70
    v_rcp_f32 v71, v71
    v_and_b32 v67, 0xffff0000, v69
    v_pk_mul_f32 v[70:71], v[64:65], v[70:71]   ; silu
    v_cvt_pk_bf16_f32 v71, v70, v71
    v_lshlrev_b32 v70, 16, v71
    v_and_b32 v71, 0xffff0000, v71
    v_pk_mul_f32 v[70:71], v[70:71], v[66:67]
    v_cvt_pk_bf16_f32 v71, v70, v71
    v_perm_b32 v70, v71, v198, s30
    v_perm_b32 v71, v71, v198, s31
    s_barrier
    global_store_dwordx2 v193, v[70:71], s[16:17] sc1
L_cjob:""")
    stamp(6)
    e("""    global_load_ushort v7, v197, s[12:13]
    s_mov_b32 s33, 0x40000""")
    e(f"""    v_not_b32 v{R}, v25
    v_not_b32 v{R+4}, v25
    v_not_b32 v{R+8}, v25
    v_and_b32 v{R+12}, 0xff, v25
    s_mov_b32 exec_hi, 0
    v_not_b32 v{R+12}, v25
    s_mov_b64 s[4:5], -1
    s_mov_b64 s[6:7], -1
    s_mov_b64 s[8:9], -1
    s_mov_b64 s[10:11], exec
L_poll2:""")
    for t in range(4):
        if o.cmask:
            e(f"    s_wqm_b64 exec, s[{4+2*t}:{5+2*t}]")
        elif t in (0, 3):
            e(f"    s_mov_b32 exec_hi, {-1 if t == 0 else 0}")
        e(f"    global_load_dwordx4 v[{R+4*t}:{R+3+4*t}], v196, s[16:17] offset:{1024*t} sc1")
    e(f"""    s_mov_b64 exec, -1
    s_sub_u32 s33, s33, 1
    s_cbranch_scc1 L_poll2_done
    s_waitcnt vmcnt({o.cd})""")
    for t in range(4):
        e(f"    v_cmp_ne_u32_sdwa s[{4+2*t}:{5+2*t}], v{R+4*t}, v25 src0_sel:BYTE_0 src1_sel:BYTE_0")
    e(f"""    s_or_b64 s[44:45], s[4:5], s[6:7]
    s_or_b64 s[46:47], s[8:9], s[10:11]
    s_or_b64 s[44:45], s[44:45], s[46:47]
    s_cbranch_scc1 L_poll2
L_poll2_done:
    v_pk_add_f32 v[32:33], v[{R}:{R+1}], v[{R+4}:{R+5}]
    v_pk_add_f32 v[36:37], v[{R+8}:{R+9}], v[{R+12}:{R+13}]
    v_pk_add_f32 v[34:35], v[{R+2}:{R+3}], v[{R+6}:{R+7}]
    v_pk_add_f32 v[38:39], v[{R+10}:{R+11}], v[{R+14}:{R+15}]
    v_pk_add_f32 v[32:33], v[32:33], v[36:37]
    v_pk_add_f32 v[34:35], v[34:35], v[38:39]
    s_nop 0""")
    stamp(7)
    e(f"""    v_permlane32_swap_b32 v32, v33
    v_permlane32_swap_b32 v34, v35
    v_add_f32 v32, v32, v33
    v_add_f32 v34, v34, v35
    s_nop 1
    v_permlane16_swap_b32 v32, v34
    v_add_f32 v32, v32, v34
    s_nop 1
    v_add_f32_dpp v32, v32, v32 row_ror:8 row_mask:0xf bank_mask:0xf
    v_cvt_pk_bf16_f32 v32, v32, v32
    s_mov_b64 exec, s[26:27]
    global_store_short v197, v32, s[12:13]""")
    if o.upd:
        e("""    s_add_u32 s22, s18, s19
    s_cmp_eq_u32 s22, 0
    s_cbranch_scc0 L_c_noupd
    v_mov_b32 v6, 0
    v_mov_b32 v7, s28
    s_mov_b64 exec, 1
    global_store_dword v6, v7, s[16:17]
L_c_noupd:""")
    stamp(8)
    if o.stamps:
        e("    s_waitcnt vmcnt(0)")
    stamp(9)
    g.count(10)
    g.fin("C", 11)
    e(f"""L_hbar:
    s_barrier
    s_branch L_cjob
L_end:
    s_endpgm
.section .rodata,"a"
.p2align 6
.amdhsa_kernel {NAME}
  .amdhsa_next_free_vgpr 208
  .amdhsa_next_free_sgpr {100 if diag else 56}
  .amdhsa_accum_offset 208
  .amdhsa_group_segment_fixed_size 0
  .amdhsa_kernarg_size 56
  .amdhsa_user_sgpr_count 2
  .amdhsa_user_sgpr_kernarg_segment_ptr 1
  .amdhsa_system_sgpr_workgroup_id_x 1
  .amdhsa_float_denorm_mode_32 3
.end_amdhsa_kernel""")
    return "\n".join(g.L) + "\n"

if __name__ == "__main__":
    ap = argparse.ArgumentParser()
    ap.add_argument("-o", required=True)
    ap.add_argument("--stamps", action="store_true")
    for k, v in dict(nt=1, local=1, pk=4, atom=1, xp=2, pp=5, upd=1, pbar=1, hd=0, cd=0, cmask=1).items():
        ap.add_argument("--" + k, type=int, default=v)
    ap.add_argument("--sched", default="10,10,10")
    ap.add_argument("--amp")
    ap.add_argument("--hold")
    a = ap.parse_args()
    open(a.o, "w").write(gen(a))
```

```python
import sys, argparse

NAME = "standalone__swiglu_ffn__decode_kernel"
P1 = 0x1000
HR = 0x80000
P2 = 0x100000
TS = 0x400000
SB = 64

class G:
    def __init__(s, o):
        s.L = []; s.o = o; s.role = "A"
    def e(s, t): s.L.append(t)
    def stamp(s, i):
        h = s.o.hold; a = s.o.amp
        if (a and (i == 0 or (int(a[1:]) == i and a[0] == s.role))) or s.o.stamps or (h and i == 0):
            s.e(f"    s_memrealtime s[{SB+2*i}:{SB+1+2*i}]")
            return True
        return False
    def count(s, i, reg="s33"):
        if s.o.stamps:
            s.e(f"    s_sub_u32 s{SB+2*i}, 0x40000, {reg}")
            s.e(f"    s_mul_i32 s{SB+2*i}, s{SB+2*i}, 100")
            s.e(f"    s_add_u32 s{SB+2*i}, s{SB+2*i}, s{SB}")
    def flag(s, i):
        if s.o.stamps:
            s.e("    s_cmp_eq_u64 s[40:41], 0")
            s.e(f"    s_cselect_b32 s{SB+2*i}, 0, 100")
            s.e(f"    s_add_u32 s{SB+2*i}, s{SB+2*i}, s{SB}")
    def fin(s, lbl, n):
        e = s.e; a = s.o.amp
        def spin(name, reg):
            e(f"L_{name}_{lbl}:")
            e("    s_sleep 2")
            e("    s_memrealtime s[98:99]")
            e("    s_waitcnt lgkmcnt(0)")
            e(f"    s_sub_u32 s98, s98, {reg}")
            e("    s_cmp_lt_i32 s98, 0")
            e(f"    s_cbranch_scc1 L_{name}_{lbl}")
        if a:
            k = int(a[1:])
            e("    s_waitcnt lgkmcnt(0)")
            e(f"    s_add_u32 s96, s{SB}, 1200")
            spin("dly", "s96")
            e("    s_mov_b64 exec, 1")
            e("    v_mov_b32 v6, 192")
            e(f"    v_not_b32 v4, s{SB}")
            e("    global_atomic_umax v6, v4, s[14:15] sc1")
            if a[0] == lbl:
                e(f"    v_mov_b32 v5, s{SB+2*k}")
                e("    global_atomic_umax v6, v5, s[14:15] offset:4 sc1")
            if lbl == "A":
                e("    s_add_u32 s96, s3, s2")
                e("    s_cmp_eq_u32 s96, 0")
                e("    s_cbranch_scc0 L_amp_done")
                e(f"    s_add_u32 s96, s{SB}, 10000")
                spin("dly2", "s96")
                e("    global_load_dwordx2 v[4:5], v6, s[14:15] sc1")
                e("    s_waitcnt vmcnt(0)")
                e("    v_not_b32 v4, v4")
                e("    v_sub_u32 v4, v5, v4")
                e("    s_nop 1")
                e("    v_readfirstlane_b32 s97, v4")
                e("    s_nop 1")
                e("    s_min_u32 s97, s97, 2000")
                e("    s_mul_i32 s97, s97, 20")
                e("    s_add_u32 s96, s96, s97")
                spin("dly3", "s96")
                e("L_amp_done:")
        if s.o.stamps:
            e("    s_waitcnt lgkmcnt(0)")
            e(f"    s_add_u32 s96, s{SB}, 1000")
            spin("sdly", "s96")
            e("    s_mov_b64 exec, 1")
            e("    s_lshl_b32 s96, s2, 8")
            e("    s_add_u32 s96, s96, s3")
            e(f"    s_add_u32 s96, s96, {TS}")
            e("    v_mov_b32 v2, s96")
            for i in range(n):
                e(f"    v_mov_b32 v3, s{SB+2*i}")
                e(f"    global_store_dword v2, v3, s[16:17] offset:{4*i}")
        if s.o.hold and lbl == "A":
            e("    s_waitcnt lgkmcnt(0)")
            e(f"    s_add_u32 s96, s{SB}, 3000")
            spin("hold", "s96")
        e("    s_endpgm")

def gen(o):
    g = G(o); e = g.e; stamp = g.stamp
    NT = " nt" if o.nt else ""
    diag = o.stamps or o.amp or o.hold
    W1 = 32; ACC = 96; BT = 128; WD = 160; WA = 192
    sched = [int(t) for t in o.sched.split(",")] if o.sched else []
    n1 = len(sched)
    if o.stamps:
        e('; GROUPS [("A",0,896,11),("C",896,1024,11)]')
    e(f"""; @launch grid=(256,1,1) block=(256,1,1) lds=16384
.amdgcn_target "amdgcn-amd-amdhsa--gfx950"
.text
.fill 512, 4, 0xbf810000                   ; keeps the entry point 8 KB-interleave-opposite to the descriptor
.globl {NAME}
.p2align 8
.type {NAME},@function
{NAME}:""")
    stamp(0)
    if o.tg: e("    s_memrealtime s[60:61]")
    e(f"""    s_load_dwordx8 s[4:11], s[0:1], 0
    s_load_dwordx4 s[12:15], s[0:1], 32
    s_load_dwordx2 s[16:17], s[0:1], 48
    v_readfirstlane_b32 s3, v0
    s_cmp_ge_u32 s2, 256
    s_cbranch_scc1 L_end
    s_and_b32 s18, s2, 7                   ; class
    s_lshr_b32 s19, s2, 5
    s_bfe_u32 s21, s2, 0x20003             ; ks
    s_add_u32 s22, s18, 3
    s_and_b32 s22, s22, 7
    s_mov_b32 s26, 0xff00ff00
    s_mov_b32 s27, s26
    s_cmp_eq_u32 s19, s22
    s_cselect_b32 s38, 0x00ff00ff, -1
    s_cselect_b32 s23, 0, s26
    s_cmp_eq_u32 s19, 7
    s_cselect_b32 s38, s23, s38
    s_cselect_b32 s22, s22, s19
    s_mov_b32 s39, s38
    s_mul_i32 s20, s18, 7
    s_add_u32 s20, s20, s22
    v_and_b32 v2, 0xf0, v0                 ; wv*64+kg*16
    v_lshl_add_u32 v2, s21, 8, v2          ; row0
    v_mul_u32_u24 v4, 7168, v2
    v_and_b32 v5, 7, v0
    v_lshl_add_u32 v4, v5, 4, v4
    v_add_u32 v4, 3584, v4
    v_lshl_add_u32 v4, s20, 7, v4
    v_mov_b32 v5, 0
    s_mov_b32 s24, 14336
    s_mov_b32 s25, 0
    v_bfe_u32 v6, v0, 2, 2                 ; batch
    v_lshlrev_b32 v6, 11, v6
    v_lshl_add_u32 v6, v2, 1, v6
    v_and_b32 v2, 3, v0
    v_lshlrev_b32 v203, 3, v2
    v_add_u32 v6, v203, v6
    s_lshl_b32 s22, s20, 13
    s_lshl_b32 s23, s21, 10
    s_add_u32 s23, s23, s22
    s_add_u32 s23, s23, {P1}
    v_and_b32 v1, 63, v0                   ; lane
    v_bfe_u32 v8, v0, 6, 1                 ; sel
    v_lshrrev_b32 v7, 7, v0
    v_lshl_add_u32 v14, v8, 12, s23
    v_lshl_add_u32 v14, v7, 9, v14
    v_lshl_add_u32 v14, v1, 4, v14
    s_getreg_b32 s50, hwreg(HW_REG_XCC_ID, 0, 4)
    s_add_u32 s50, s50, 1
    s_mov_b32 s51, s50
    s_cmp_lt_u32 s19, 7
    s_cbranch_scc1 L_stream
    s_lshl_b32 s22, s18, 2
    s_add_u32 s22, s22, s21
    s_lshl_b32 s22, s22, 2
    v_mov_b32 v9, s22
    v_mov_b32 v3, s50
    s_cmp_eq_u32 s3, 0
    s_waitcnt lgkmcnt(0)
    s_cbranch_scc0 L_notab""")
    if o.notab: e("    s_branch L_notab")
    e("""    s_mov_b64 exec, 1
    global_store_dword v9, v3, s[14:15] sc1
    s_mov_b64 exec, -1
L_notab:
    s_cmp_eq_u32 s38, 0
    s_cbranch_scc1 L_hidle
L_stream:
    s_waitcnt lgkmcnt(0)""")
    stamp(1)
    e("""    v_lshl_add_u64 v[10:11], v[4:5], 0, s[6:7]
    s_mov_b64 exec, s[26:27]
    v_lshl_add_u64 v[10:11], v[4:5], 0, s[8:9]""")
    for p in range(8):
        if p == o.xp:
            e("""    s_mov_b64 exec, -1
    global_load_dwordx2 v[26:27], v6, s[4:5]""")
        if p == o.xp or p == 0:
            e("    s_mov_b64 exec, s[38:39]")
        e(f"    global_load_dwordx4 v[{W1+8*p}:{W1+8*p+3}], v[10:11], off offset:-3584{NT}")
        e(f"    global_load_dwordx4 v[{W1+8*p+4}:{W1+8*p+7}], v[10:11], off offset:3584{NT}")
        if p == o.pp:
            e("""    s_mov_b32 exec_lo, -1
    s_mov_b32 exec_hi, 0
    global_load_dword v24, v14, s[16:17]%s   ; bring the hand-off lines into L2""" % (" nt" if o.prent else ""))
            if p < 7 and p + 1 != o.xp: e("    s_mov_b64 exec, s[38:39]")
            if p < 7 and p + 1 == o.xp: e("    s_mov_b64 exec, -1")
        if p < 7:
            e("    v_lshl_add_u64 v[10:11], v[10:11], 0, s[24:25]")
    e("    s_mov_b64 exec, -1")
    stamp(2)
    def tagsetup():
        e("""    s_add_u32 s28, s28, 1
    s_bitset1_b32 s28, 31
    s_and_b32 s52, s28, 0xff
    s_mul_i32 s52, s52, 0x01010100
    s_xor_b32 s52, s52, s28
    v_lshrrev_b32 v25, v203, s52""")
    def tabcheck():
        e("""    s_xor_b64 s[40:41], s[40:41], s[50:51]
    s_xor_b64 s[42:43], s[42:43], s[50:51]
    s_or_b64 s[40:41], s[40:41], s[42:43]""")
        if not o.local:
            e("    s_or_b32 s40, s40, 1")
        if o.notab:
            e("    s_and_b64 s[40:41], s[40:41], 0")
    def reduce_publish(addr_lds, off, addr_g, far, done):
        e(f"""    ds_read_b128 v[32:35], {addr_lds} offset:{off}
    ds_read_b128 v[36:39], {addr_lds} offset:{off+2048}
    ds_read_b128 v[40:43], {addr_lds} offset:{off+4096}
    ds_read_b128 v[44:47], {addr_lds} offset:{off+6144}
    s_waitcnt lgkmcnt(2)
    v_pk_add_f32 v[32:33], v[32:33], v[36:37]
    v_pk_add_f32 v[34:35], v[34:35], v[38:39]
    s_waitcnt lgkmcnt(1)
    v_pk_add_f32 v[32:33], v[32:33], v[40:41]
    v_pk_add_f32 v[34:35], v[34:35], v[42:43]
    s_waitcnt lgkmcnt(0)
    v_pk_add_f32 v[32:33], v[32:33], v[44:45]
    v_pk_add_f32 v[34:35], v[34:35], v[46:47]
    v_perm_b32 v32, v32, v25, s34
    s_cbranch_scc1 {far}
    global_store_dwordx4 {addr_g}, v[32:35], s[16:17]
{done}:""")
    e(f"""    s_load_dword s28, s[16:17], 0
    s_mov_b32 s34, 0x07060500
    s_bitcmp1_b32 s3, 6
    s_cselect_b32 s48, 8, 0
    s_bitcmp1_b32 s38, s48
    s_cselect_b32 s48, -1, 0
    s_mov_b32 s49, 0
    s_mov_b32 s30, 0x0c0c0100
    s_mov_b32 s31, 0x0c0c0302
    s_mov_b32 vcc_lo, 0x33333333
    s_mov_b32 vcc_hi, 0x33333333
    v_and_b32 v9, 1, v0
    v_lshlrev_b32 v9, 4, v9
    v_alignbit_b32 v2, s30, s30, v9
    v_alignbit_b32 v3, s31, s31, v9
    v_mov_b32 v9, 0x0c0c0c0c
    v_cndmask_b32 v28, v9, v2, vcc
    v_cndmask_b32 v29, v2, v9, vcc
    v_cndmask_b32 v30, v9, v3, vcc
    v_cndmask_b32 v31, v3, v9, vcc
    v_bfe_u32 v9, v0, 4, 2
    v_lshlrev_b32 v9, 2, v9
    v_xor_b32 v9, v9, v1
    v_lshlrev_b32 v12, 4, v9
    v_lshrrev_b32 v3, 6, v0                ; wv
    v_lshl_add_u32 v12, v3, 11, v12
    v_lshl_add_u32 v8, v8, 1, v7
    v_bfe_u32 v9, v0, 1, 2
    v_xor_b32 v8, v8, v9
    v_bfe_u32 v9, v0, 1, 3
    v_lshlrev_b32 v13, 8, v9
    v_lshl_add_u32 v13, v8, 6, v13
    v_and_b32 v9, 1, v0
    v_lshl_add_u32 v13, v9, 5, v13
    v_bfe_u32 v9, v0, 4, 1
    v_lshl_add_u32 v13, v9, 4, v13""")
    after_x = 16 - 2*o.xp + (1 if o.pp >= o.xp else 0)
    def after_row(r): return (15 - r) + (1 if r < 2*o.xp else 0) + (1 if r <= 2*o.pp + 1 else 0)
    e(f"    s_waitcnt vmcnt({after_x})")
    for d in range(8):
        e(f"    v_mov_b32_dpp v{16+d}, v{26+d%2} quad_perm:[{d//2},{d//2},{d//2},{d//2}] row_mask:0xf bank_mask:0xf")
    for r in range(16):
        for t in range(2):
            e(f"    v_perm_b32 v{BT+2*r+t}, v{16+r//2}, v{16+r//2}, v{28+2*(r%2)+t}")
    e("""    s_cmp_ge_u32 s2, 224
    s_cbranch_scc1 L_helper""")
    def wdload(k):
        e(f"    global_load_dwordx4 v[{WD+4*k}:{WD+4*k+3}], v{WA+k//4}, s[10:11] offset:{2048*(k%4)-4096}{' nt' if o.ntd else ''}")
    def phase1(worker, far, done):
        nw = 0
        for r in range(16):
            e(f"    s_waitcnt vmcnt({after_row(r) + nw})")
            if r == 15: stamp(3)
            if worker and r < 15:
                while nw < n1 and sched[nw] == r:
                    wdload(nw); nw += 1
            for h in range(2):
                cc = "0" if r == 0 else f"v[{ACC+4*h}:{ACC+4*h+3}]"
                e(f"    v_mfma_f32_16x16x16_bf16 v[{ACC+4*h}:{ACC+4*h+3}], v[{BT+2*r}:{BT+2*r+1}], v[{W1+4*r+2*h}:{W1+4*r+2*h+1}], {cc}")
            if r == 7:
                e("""    s_waitcnt lgkmcnt(0)
    s_lshl_b32 s22, s18, 4
    s_load_dwordx4 s[40:43], s[14:15], s22""")
                tagsetup()
            if r == 13:
                e("    s_waitcnt lgkmcnt(0)")
                tabcheck()
        k15 = 0
        if worker:
            while nw < n1:
                wdload(nw); nw += 1; k15 += 1
        e(f"""    s_nop {6 - k15}
    ds_write_b128 v12, v[{ACC}:{ACC+3}]
    ds_write_b128 v12, v[{ACC+4}:{ACC+7}] offset:1024
    s_mov_b64 exec, s[48:49]
    s_waitcnt lgkmcnt(0)
    s_barrier
    s_cbranch_execz {done}""")
        reduce_publish("v13", 0, "v14", far, done)
        e("    s_mov_b64 exec, -1")
    e(f"""    s_lshr_b32 s19, s2, 3                  ; i
    v_bfe_u32 v2, v0, 4, 2                 ; kg
    v_lshlrev_b32 v4, 13, v2
    v_lshl_add_u32 v4, v3, 16, v4
    v_and_b32 v5, 15, v0
    v_lshl_add_u32 v4, v5, 4, v4
    s_lshl_b32 s22, s19, 18
    s_lshl_b32 s23, s18, 8
    s_add_u32 s22, s22, s23
    s_add_u32 s22, s22, 4096
    v_add_u32 v{WA}, s22, v4
    v_add_u32 v{WA+1}, 0x8000, v{WA}
    v_bfe_u32 v2, v0, 3, 2
    v_lshl_add_u32 v2, v3, 2, v2           ; piece
    v_mul_u32_u24 v15, 3584, v2
    v_and_b32 v2, 7, v0
    v_lshl_add_u32 v15, v2, 4, v15
    s_mul_i32 s22, s18, 57344
    s_lshl_b32 s23, s19, 7
    s_add_u32 s22, s22, s23
    s_add_u32 s22, s22, {P2}
    v_add_u32 v15, s22, v15
""")
    if o.par >= 0:
        e(f"""    s_and_b32 s22, s19, 28
    s_add_u32 s22, s22, s19
    s_getreg_b32 s23, hwreg(HW_REG_XCC_ID, 2, 1)
    s_xor_b32 s23, s23, {o.par}
    s_lshl_b32 s23, s23, 2
    s_add_u32 s22, s22, s23
    s_lshl_b32 s22, s22, 11""")
    else:
        e("    s_lshl_b32 s22, s19, 11")
    e(f"""    ; h offset: HR + i*2048 + tid*8
    s_add_u32 s22, s22, {HR}
    v_lshl_add_u32 v196, v0, 3, s22
    v_lshlrev_b32 v197, 2, v1
    v_lshl_add_u32 v197, v3, 11, v197
    v_lshlrev_b32 v202, 4, v1
    v_lshl_add_u32 v202, v3, 9, v202
    v_mov_b32 v198, 0
    v_mov_b32 v199, 0
    s_mov_b32 s30, 0x05040100
    s_mov_b32 s31, 0x07060302
    s_mov_b32 s33, 0x40000""")
    phase1(True, "L_pub_far", "L_pub_done")
    stamp(4)
    if o.pbar: e("    s_barrier")
    n2 = o.n2 if o.n2 else 8
    for k in range(n1, n2): wdload(k)
    if n2 < 8:
        e(f"    s_waitcnt vmcnt({n2-n1-1})")
        for k in range(n2, 8): wdload(k)
    def hld(first=False):
        if o.atom == 3 and first:
            e("    v_add_u32 v8, 0x10000, v196")
            e("    global_load_dwordx2 v[200:201], v8, s[16:17] sc1")
        elif o.atom in (1, 3) or (o.atom == 2 and not first):
            e("    global_atomic_add_x2 v[200:201], v196, v[198:199], s[16:17] sc0")
        else:
            e("    global_load_dwordx2 v[200:201], v196, s[16:17] sc1")
    issued = 0
    for d in range(4):
        e(f"    s_waitcnt vmcnt({6 - 2*d + issued})")
        if d == 3: stamp(5)
        if 6 - 2*d == o.pk:
            if o.tg:
                e(f"""    s_add_u32 s60, s60, {o.tg}
L_tg:
    s_memrealtime s[62:63]
    s_waitcnt lgkmcnt(0)
    s_sub_u32 s62, s62, s60
    s_cmp_lt_i32 s62, 0
    s_cbranch_scc1 L_tg""")
            if o.slp: e(f"    s_sleep {o.slp}")
            hld(True); issued = 1
        for c in range(8):
            e(f"    v_perm_b32 v{BT+4*c+d}, v{WD+4*(2*d+1)+c//2}, v{WD+4*(2*d)+c//2}, {'s30' if c % 2 == 0 else 's31'}")
    e("""L_pollh:
    s_waitcnt vmcnt(0)
    v_perm_b32 v9, v201, v200, s31
    v_cmp_ne_u32_sdwa vcc, v200, s52 src0_sel:WORD_0 src1_sel:WORD_0
    v_cmp_ne_u32_sdwa s[44:45], v201, s52 src0_sel:WORD_0 src1_sel:WORD_1""")
    for d in range(4):
        e(f"    v_mov_b32_dpp v{16+d}, v9 quad_perm:[{d},{d},{d},{d}] row_mask:0xf bank_mask:0xf")
    e("""    s_or_b64 s[44:45], s[44:45], vcc
    s_cbranch_scc1 L_pollh_again
L_pollh_done:""")
    stamp(6)
    for c in range(8):
        e(f"    v_mfma_f32_16x16x32_bf16 v[{ACC+4*c}:{ACC+4*c+3}], v[16:19], v[{BT+4*c}:{BT+4*c+3}], 0")
    def dsw(c):
        e(f"    ds_write2st64_b32 v197, v{ACC+4*c}, v{ACC+4*c+4} offset0:{32+c} offset1:{33+c}")
    e("    s_cmp_lg_u64 s[40:41], 0")
    e("    s_nop 0")
    dsw(0)
    e("    s_nop 0")
    dsw(2)
    e("    s_nop 0")
    dsw(4)
    e("    s_nop 0")
    dsw(6)
    e("""    s_mov_b32 exec_hi, 0
    s_waitcnt lgkmcnt(0)
    s_barrier""")
    if stamp(7): e("    s_waitcnt lgkmcnt(0)")
    reduce_publish("v202", 8192, "v15", "L_pub2_far", "L_pub2_done")
    stamp(8)
    if o.wb == 1:
        e("""    s_add_u32 s22, s19, s3
    s_cmp_eq_u32 s22, 0
    s_cbranch_scc0 L_nowb
    buffer_wbl2 sc1
L_nowb:""")
    g.count(9)
    g.flag(10)
    g.fin("A", 11)
    e("L_pollh_again:")
    hld()
    e("""    s_sub_u32 s33, s33, 1
    s_cbranch_scc0 L_pollh
    s_branch L_pollh_done
L_pub_far:
    global_store_dwordx4 v14, v[32:35], s[16:17] sc1
    s_branch L_pub_done
L_pub2_far:
    global_store_dwordx4 v15, v[32:35], s[16:17] sc1
    s_branch L_pub2_done
L_hpub_far:
    global_store_dwordx4 v14, v[32:35], s[16:17] sc1
    s_branch L_hpub_done""")
    g.role = "C"
    R = 160
    def hsetup():
        e(f"""    s_lshr_b32 s19, s3, 6
    s_lshl_b32 s22, s21, 2
    s_add_u32 s19, s19, s22                ; job
    s_mul_i32 s44, s18, 14
    s_add_u32 s44, s44, s19
    s_lshr_b32 s22, s44, 1
    s_lshl_b32 s22, s22, 13
    s_and_b32 s23, s44, 1
    s_lshl_b32 s23, s23, 9
    s_add_u32 s22, s22, s23
    s_add_u32 s22, s22, {P1 + 4096}
    v_lshl_add_u32 v192, v1, 3, s22
    s_and_b32 s22, s44, {112 if o.par >= 0 else 0}
    s_add_u32 s22, s22, s44
    s_lshl_b32 s22, s22, 9
    s_add_u32 s22, s22, {HR}
    v_lshl_add_u32 v193, v1, 3, s22        ; h offset
    v_add_u32 v200, {0x10000 if o.atom == 3 else 8192}, v193
    v_bfe_u32 v4, v0, 1, 2
    v_lshlrev_b32 v194, 3, v4
    v_and_b32 v4, 1, v0
    v_sub_u32 v4, 1, v4
    v_mul_u32_u24 v195, 0xff, v4
    s_mul_i32 s22, s19, 3584
    s_mul_i32 s23, s18, 57344
    s_add_u32 s22, s22, s23
    s_add_u32 s22, s22, {P2}
    v_lshl_add_u32 v196, v1, 4, s22
    s_and_b32 s22, s19, 1
    s_lshl_b32 s22, s22, 12
    s_lshl_b32 s23, s18, 8
    s_add_u32 s22, s22, s23
    s_and_b32 s23, s19, 14
    s_add_u32 s22, s22, s23
    v_bfe_u32 v2, v0, 2, 1
    v_lshl_add_u32 v197, v2, 11, s22
    v_and_b32 v2, 3, v0
    v_lshl_add_u32 v197, v2, 6, v197
    v_bfe_u32 v2, v0, 4, 1
    v_lshl_add_u32 v197, v2, 5, v197
    v_bfe_u32 v2, v0, 5, 1
    v_lshl_add_u32 v197, v2, 4, v197
    v_mov_b32 v{R+13}, 0
    v_mov_b32 v{R+14}, 0
    v_mov_b32 v{R+15}, 0
    s_mov_b32 s30, 0x05040100
    s_mov_b32 s31, 0x07060302
    s_mov_b32 s33, 0x40000
    s_mov_b32 s26, 0x00ff00ff
    s_mov_b32 s27, s26""")
    e("""L_hidle:
    s_load_dword s28, s[16:17], 0""")
    if diag:
        e(f"    s_mov_b32 s{SB+2}, s{SB}")
    if o.prewh:
        e(f"""    s_lshl_b32 s22, s21, 8
    s_add_u32 s22, s22, s3
    s_mul_i32 s22, s22, 56
    s_add_u32 s22, s22, {HR}
    v_lshl_add_u32 v9, v1, 3, s22
    v_mov_b32 v2, 0
    v_mov_b32 v3, 0""")
        for k in range(7):
            if o.prewh == 1:
                e(f"    global_atomic_add_x2 v9, v[2:3], s[16:17] offset:{512*k}")
            else:
                e(f"    global_load_dwordx2 v[{100+2*k}:{101+2*k}], v9, s[16:17] offset:{512*k}")
    if diag:
        e(f"    s_mov_b32 s{SB+4}, s{SB}")
        e(f"    s_mov_b32 s{SB+6}, s{SB}")
    hsetup()
    e("    s_waitcnt lgkmcnt(0)")
    tagsetup()
    e("""    s_branch L_hjob
L_helper:""")
    hsetup()
    phase1(False, "L_hpub_far", "L_hpub_done")
    e("""L_hjob:
    v_lshrrev_b32 v194, v194, s52
    v_mov_b32 v198, s52
    s_movk_i32 s45, 0x80
    s_mov_b32 s46, 0xbfb8aa3b              ; -log2(e)
    s_mov_b32 s47, s46""")
    if o.hd:
        for i in range(8):
            e(f"    v_not_b32 v{48+2*i}, v194")
    e("    s_cmp_ge_u32 s19, 14")
    stamp(4)
    if diag:
        e(f"    s_mov_b32 s{SB+10}, s{SB}")
    e("""    s_cbranch_scc1 L_hbar
L_poll1:""")
    for i in range(8):
        e(f"    global_load_dwordx2 v[{48+2*i}:{49+2*i}], v192, s[16:17] offset:{-4096+1024*i} sc1")
    e("""    s_sub_u32 s33, s33, 1
    s_cbranch_scc1 L_poll1_done""")
    e("""    s_waitcnt vmcnt(6)
    v_bitop3_b32 v72, v194, v48, v50 bitop3:0x7e
    v_bfi_b32 v48, v195, s45, v48
    v_bfi_b32 v50, v195, s45, v50
    v_pk_add_f32 v[76:77], v[48:49], v[50:51]
    s_waitcnt vmcnt(4)
    v_bitop3_b32 v73, v194, v52, v54 bitop3:0x7e
    v_bfi_b32 v52, v195, s45, v52
    v_bfi_b32 v54, v195, s45, v54
    v_pk_add_f32 v[78:79], v[52:53], v[54:55]
    v_pk_add_f32 v[64:65], v[76:77], v[78:79]
    s_waitcnt vmcnt(2)
    v_bitop3_b32 v74, v194, v56, v58 bitop3:0x7e
    v_cvt_pk_bf16_f32 v68, v64, v65
    v_or3_b32 v72, v72, v73, v74
    v_lshlrev_b32 v64, 16, v68
    v_and_b32 v65, 0xffff0000, v68
    s_waitcnt vmcnt(0)
    v_bitop3_b32 v75, v194, v60, v62 bitop3:0x7e
    v_bitop3_b32 v72, v72, v75, v195 bitop3:0xa8
    v_cmp_ne_u32 vcc, 0, v72
    v_pk_mul_f32 v[70:71], v[64:65], s[46:47]
    s_cbranch_vccnz L_poll1
L_poll1_done:""")
    stamp(5)
    e("""    v_exp_f32 v70, v70
    v_exp_f32 v71, v71
    v_bfi_b32 v56, v195, s45, v56
    v_bfi_b32 v58, v195, s45, v58
    v_pk_add_f32 v[70:71], v[70:71], 1.0 op_sel_hi:[1,0]
    v_bfi_b32 v60, v195, s45, v60
    v_rcp_f32 v70, v70
    v_rcp_f32 v71, v71
    v_bfi_b32 v62, v195, s45, v62
    v_pk_add_f32 v[80:81], v[56:57], v[58:59]
    v_pk_add_f32 v[82:83], v[60:61], v[62:63]
    v_pk_mul_f32 v[70:71], v[64:65], v[70:71]   ; silu
    v_pk_add_f32 v[66:67], v[80:81], v[82:83]
    v_cvt_pk_bf16_f32 v71, v70, v71
    v_cvt_pk_bf16_f32 v69, v66, v67
    v_lshlrev_b32 v70, 16, v71
    v_and_b32 v71, 0xffff0000, v71
    v_lshlrev_b32 v66, 16, v69
    v_and_b32 v67, 0xffff0000, v69
    v_pk_mul_f32 v[70:71], v[70:71], v[66:67]
    v_cvt_pk_bf16_f32 v71, v70, v71
    v_perm_b32 v70, v71, v198, s30
    v_perm_b32 v71, v71, v198, s31
    s_barrier
    global_store_dwordx2 v193, v[70:71], s[16:17] sc1""")
    if o.par >= 0 or o.atom == 3:
        e("    global_store_dwordx2 v200, v[70:71], s[16:17] sc1")
    e("L_cjob:")
    stamp(6)
    if o.cw >= 2: e("    s_waitcnt vmcnt(0)")
    e("""    global_load_ushort v7, v197, s[12:13]
    s_mov_b32 s33, 0x40000""")
    assert o.cd == 0
    e(f"""    v_mov_b32 v199, 0xff
    v_not_b32 v{R}, v25
    v_not_b32 v{R+4}, v25
    v_not_b32 v{R+8}, v25
    v_and_b32 v{R+12}, 0xff, v25
    s_mov_b32 exec_hi, 0
    v_not_b32 v{R+12}, v25
    s_mov_b64 s[4:5], -1
    s_mov_b64 s[6:7], -1
    s_mov_b64 s[8:9], -1
    s_mov_b64 s[10:11], exec""")
    if o.cw >= 1: e("    s_waitcnt vmcnt(0)")
    e("L_poll2:")
    for t in range(4):
        if o.cmask:
            e(f"    s_wqm_b64 exec, s[{4+2*t}:{5+2*t}]")
        elif t in (0, 3):
            e(f"    s_mov_b32 exec_hi, {-1 if t == 0 else 0}")
        e(f"    global_load_dwordx4 v[{R+4*t}:{R+3+4*t}], v196, s[16:17] offset:{1024*t} sc1")
    e(f"""    s_mov_b64 exec, -1
    s_sub_u32 s33, s33, 1
    s_cbranch_scc1 L_poll2_done
    s_waitcnt vmcnt({o.cd})""")
    for t in range(4):
        e(f"    v_cmp_ne_u32_sdwa s[{4+2*t}:{5+2*t}], v{R+4*t}, v25 src0_sel:BYTE_0 src1_sel:BYTE_0")
    e(f"""    v_pk_add_f32 v[34:35], v[{R+2}:{R+3}], v[{R+6}:{R+7}]
    s_or_b64 s[42:43], s[4:5], s[6:7]
    s_or_b64 s[46:47], s[8:9], s[10:11]
    s_or_b64 s[42:43], s[42:43], s[46:47]
    s_cbranch_scc1 L_poll2
L_poll2_done:
    v_bfi_b32 v{R}, v199, s45, v{R}
    v_bfi_b32 v{R+4}, v199, s45, v{R+4}
    v_bfi_b32 v{R+8}, v199, s45, v{R+8}
    v_bfi_b32 v{R+12}, v199, s45, v{R+12}
    v_pk_add_f32 v[32:33], v[{R}:{R+1}], v[{R+4}:{R+5}]
    v_pk_add_f32 v[36:37], v[{R+8}:{R+9}], v[{R+12}:{R+13}]
    v_pk_add_f32 v[38:39], v[{R+10}:{R+11}], v[{R+14}:{R+15}]
    v_pk_add_f32 v[32:33], v[32:33], v[36:37]
    v_pk_add_f32 v[34:35], v[34:35], v[38:39]
    s_nop 0""")
    stamp(7)
    e(f"""    v_permlane32_swap_b32 v32, v33
    v_permlane32_swap_b32 v34, v35
    v_add_f32 v32, v32, v33
    v_add_f32 v34, v34, v35
    s_nop 1
    v_permlane16_swap_b32 v32, v34
    v_add_f32 v32, v32, v34
    s_nop 1
    v_add_f32_dpp v32, v32, v32 row_ror:8 row_mask:0xf bank_mask:0xf
    v_cvt_pk_bf16_f32 v32, v32, v32
    s_mov_b64 exec, s[26:27]
    global_store_short v197, v32, s[12:13]""")
    if o.upd:
        e("""    s_add_u32 s22, s18, s19
    s_cmp_eq_u32 s22, 0
    s_cbranch_scc0 L_c_noupd
    v_mov_b32 v6, 0
    v_mov_b32 v7, s28
    s_mov_b64 exec, 1
    global_store_dword v6, v7, s[16:17]
L_c_noupd:""")
    stamp(8)
    if o.stamps:
        e("    s_waitcnt vmcnt(0)")
    stamp(9)
    g.count(10)
    g.fin("C", 11)
    e(f"""L_hbar:
    s_barrier
{"    buffer_wbl2 sc1" if o.wb == 2 else ""}
    s_branch L_cjob
L_end:
    s_endpgm
.section .rodata,"a"
.p2align 6
.amdhsa_kernel {NAME}
  .amdhsa_next_free_vgpr 208
  .amdhsa_next_free_sgpr {100 if (diag or o.tg) else 56}
  .amdhsa_accum_offset 208
  .amdhsa_group_segment_fixed_size 0
  .amdhsa_kernarg_size 56
  .amdhsa_user_sgpr_count 2
  .amdhsa_user_sgpr_kernarg_segment_ptr 1
  .amdhsa_system_sgpr_workgroup_id_x 1
  .amdhsa_float_denorm_mode_32 3
.end_amdhsa_kernel""")
    return "\n".join(g.L) + "\n"

if __name__ == "__main__":
    ap = argparse.ArgumentParser()
    ap.add_argument("-o", required=True)
    ap.add_argument("--stamps", action="store_true")
    for k, v in dict(nt=1, local=1, pk=4, atom=1, xp=2, pp=5, upd=1, pbar=1, hd=0, cd=0, cmask=1, prewh=0, notab=0, tg=0, cw=0, prent=0, ntd=1, n2=0, wb=0, par=-1, slp=0).items():
        ap.add_argument("--" + k, type=int, default=v)
    ap.add_argument("--sched", default="10,10,10")
    ap.add_argument("--amp")
    ap.add_argument("--hold")
    a = ap.parse_args()
    open(a.o, "w").write(gen(a))
```

```python
import sys, argparse

NAME = "standalone__swiglu_ffn__decode_kernel"
P1 = 0x1000
HR = 0x80000
P2 = 0x100000
TS = 0x400000
SB = 64

class G:
    def __init__(s, o):
        s.L = []; s.o = o; s.role = "A"
    def e(s, t): s.L.append(t)
    def stamp(s, i):
        h = s.o.hold; a = s.o.amp
        if (a and (i == 0 or (int(a[1:]) == i and a[0] == s.role))) or s.o.stamps or (h and i == 0):
            s.e(f"    s_memrealtime s[{SB+2*i}:{SB+1+2*i}]")
            return True
        return False
    def count(s, i, reg="s33"):
        if s.o.stamps:
            s.e(f"    s_sub_u32 s{SB+2*i}, 0x40000, {reg}")
            s.e(f"    s_mul_i32 s{SB+2*i}, s{SB+2*i}, 100")
            s.e(f"    s_add_u32 s{SB+2*i}, s{SB+2*i}, s{SB}")
    def flag(s, i):
        if s.o.stamps:
            s.e("    s_cmp_eq_u64 s[40:41], 0")
            s.e(f"    s_cselect_b32 s{SB+2*i}, 0, 100")
            s.e(f"    s_add_u32 s{SB+2*i}, s{SB+2*i}, s{SB}")
    def fin(s, lbl, n):
        e = s.e; a = s.o.amp
        def spin(name, reg):
            e(f"L_{name}_{lbl}:")
            e("    s_sleep 2")
            e("    s_memrealtime s[98:99]")
            e("    s_waitcnt lgkmcnt(0)")
            e(f"    s_sub_u32 s98, s98, {reg}")
            e("    s_cmp_lt_i32 s98, 0")
            e(f"    s_cbranch_scc1 L_{name}_{lbl}")
        if a:
            k = int(a[1:])
            e("    s_waitcnt lgkmcnt(0)")
            e(f"    s_add_u32 s96, s{SB}, 1200")
            spin("dly", "s96")
            e("    s_mov_b64 exec, 1")
            e("    v_mov_b32 v6, 192")
            e(f"    v_not_b32 v4, s{SB}")
            e("    global_atomic_umax v6, v4, s[14:15] sc1")
            if a[0] == lbl:
                e(f"    v_mov_b32 v5, s{SB+2*k}")
                e("    global_atomic_umax v6, v5, s[14:15] offset:4 sc1")
            if lbl == "A":
                e("    s_add_u32 s96, s3, s2")
                e("    s_cmp_eq_u32 s96, 0")
                e("    s_cbranch_scc0 L_amp_done")
                e(f"    s_add_u32 s96, s{SB}, 10000")
                spin("dly2", "s96")
                e("    global_load_dwordx2 v[4:5], v6, s[14:15] sc1")
                e("    s_waitcnt vmcnt(0)")
                e("    v_not_b32 v4, v4")
                e("    v_sub_u32 v4, v5, v4")
                e("    s_nop 1")
                e("    v_readfirstlane_b32 s97, v4")
                e("    s_nop 1")
                e("    s_min_u32 s97, s97, 2000")
                e("    s_mul_i32 s97, s97, 20")
                e("    s_add_u32 s96, s96, s97")
                spin("dly3", "s96")
                e("L_amp_done:")
        if s.o.stamps:
            e("    s_waitcnt lgkmcnt(0)")
            e(f"    s_add_u32 s96, s{SB}, 1000")
            spin("sdly", "s96")
            e("    s_mov_b64 exec, 1")
            e("    s_lshl_b32 s96, s2, 8")
            e("    s_add_u32 s96, s96, s3")
            e(f"    s_add_u32 s96, s96, {TS}")
            e("    v_mov_b32 v2, s96")
            for i in range(n):
                e(f"    v_mov_b32 v3, s{SB+2*i}")
                e(f"    global_store_dword v2, v3, s[16:17] offset:{4*i}")
        if s.o.hold and lbl == "A":
            e("    s_waitcnt lgkmcnt(0)")
            e(f"    s_add_u32 s96, s{SB}, 3000")
            spin("hold", "s96")
        e("    s_endpgm")

def gen(o):
    g = G(o); e = g.e; stamp = g.stamp
    NT = " nt" if o.nt else ""
    diag = o.stamps or o.amp or o.hold
    W1 = 32; ACC = 96; BT = 128; WD = 160; WA = 192
    sched = [int(t) for t in o.sched.split(",")] if o.sched else []
    n1 = len(sched)
    if o.stamps:
        e('; GROUPS [("A",0,896,11),("C",896,1024,11)]')
    e(f"""; @launch grid=(256,1,1) block=(256,1,1) lds=16384
.amdgcn_target "amdgcn-amd-amdhsa--gfx950"
.text
.fill 512, 4, 0xbf810000                   ; keeps the entry point 8 KB-interleave-opposite to the descriptor
.globl {NAME}
.p2align 8
.type {NAME},@function
{NAME}:""")
    stamp(0)
    if o.tg: e("    s_memrealtime s[60:61]")
    e(f"""    s_load_dwordx8 s[4:11], s[0:1], 0
    s_load_dwordx4 s[12:15], s[0:1], 32
    s_load_dwordx2 s[16:17], s[0:1], 48
    v_readfirstlane_b32 s3, v0
    s_cmp_ge_u32 s2, 256
    s_cbranch_scc1 L_end
    s_and_b32 s18, s2, 7                   ; class
    s_lshr_b32 s19, s2, 5
    s_bfe_u32 s21, s2, 0x20003             ; ks
    s_add_u32 s22, s18, 3
    s_and_b32 s22, s22, 7
    s_mov_b32 s26, 0xff00ff00
    s_mov_b32 s27, s26
    s_cmp_eq_u32 s19, s22
    s_cselect_b32 s38, 0x00ff00ff, -1
    s_cselect_b32 s23, 0, s26
    s_cmp_eq_u32 s19, 7
    s_cselect_b32 s38, s23, s38
    s_cselect_b32 s22, s22, s19
    s_mov_b32 s39, s38
    s_mul_i32 s20, s18, 7
    s_add_u32 s20, s20, s22
    v_and_b32 v2, 0xf0, v0                 ; wv*64+kg*16
    v_lshl_add_u32 v2, s21, 8, v2          ; row0
    v_mul_u32_u24 v4, 7168, v2
    v_and_b32 v5, 7, v0
    v_lshl_add_u32 v4, v5, 4, v4
    v_add_u32 v4, 3584, v4
    v_lshl_add_u32 v4, s20, 7, v4
    v_mov_b32 v5, 0
    s_mov_b32 s24, 14336
    s_mov_b32 s25, 0
    v_bfe_u32 v6, v0, 2, 2                 ; batch
    v_lshlrev_b32 v6, 11, v6
    v_lshl_add_u32 v6, v2, 1, v6
    v_and_b32 v2, 3, v0
    v_lshlrev_b32 v203, 3, v2
    v_add_u32 v6, v203, v6
    s_lshl_b32 s22, s20, 13
    s_lshl_b32 s23, s21, 10
    s_add_u32 s23, s23, s22
    s_add_u32 s23, s23, {P1}
    v_and_b32 v1, 63, v0                   ; lane
    v_bfe_u32 v8, v0, 6, 1                 ; sel
    v_lshrrev_b32 v7, 7, v0
    v_lshl_add_u32 v14, v8, 12, s23
    v_lshl_add_u32 v14, v7, 9, v14
    v_lshl_add_u32 v14, v1, 4, v14
    s_getreg_b32 s50, hwreg(HW_REG_XCC_ID, 0, 4)
    s_add_u32 s50, s50, 1
    s_mov_b32 s51, s50
    s_cmp_lt_u32 s19, 7
    s_cbranch_scc1 L_stream
    s_lshl_b32 s22, s18, 2
    s_add_u32 s22, s22, s21
    s_lshl_b32 s22, s22, 2
    v_mov_b32 v9, s22
    v_mov_b32 v3, s50
    s_cmp_eq_u32 s3, 0
    s_waitcnt lgkmcnt(0)
    s_cbranch_scc0 L_notab""")
    if o.notab: e("    s_branch L_notab")
    e("""    s_mov_b64 exec, 1
    global_store_dword v9, v3, s[14:15] sc1
    s_mov_b64 exec, -1
L_notab:
    s_cmp_eq_u32 s38, 0
    s_cbranch_scc1 L_hidle
L_stream:
    s_waitcnt lgkmcnt(0)""")
    stamp(1)
    e("""    v_lshl_add_u64 v[10:11], v[4:5], 0, s[6:7]
    s_mov_b64 exec, s[26:27]
    v_lshl_add_u64 v[10:11], v[4:5], 0, s[8:9]""")
    for p in range(o.win // 2):
        if p == o.xp:
            e("""    s_mov_b64 exec, -1
    global_load_dwordx2 v[26:27], v6, s[4:5]""")
        if p == o.xp or p == 0:
            e("    s_mov_b64 exec, s[38:39]")
        e(f"    global_load_dwordx4 v[{W1+8*p}:{W1+8*p+3}], v[10:11], off offset:-3584{NT}")
        e(f"    global_load_dwordx4 v[{W1+8*p+4}:{W1+8*p+7}], v[10:11], off offset:3584{NT}")
        if p == o.pp:
            e("""    s_mov_b32 exec_lo, -1
    s_mov_b32 exec_hi, 0
    global_load_dword v24, v14, s[16:17]%s   ; bring the hand-off lines into L2""" % (" nt" if o.prent else ""))
            if p < 7 and p + 1 != o.xp: e("    s_mov_b64 exec, s[38:39]")
            if p < 7 and p + 1 == o.xp: e("    s_mov_b64 exec, -1")
        if p < 7:
            e("    v_lshl_add_u64 v[10:11], v[10:11], 0, s[24:25]")
    e("    s_mov_b64 exec, -1")
    stamp(2)
    def tagsetup():
        e("""    s_add_u32 s28, s28, 1
    s_bitset1_b32 s28, 31
    s_and_b32 s52, s28, 0xff
    s_mul_i32 s52, s52, 0x01010100
    s_xor_b32 s52, s52, s28
    v_lshrrev_b32 v25, v203, s52""")
    def tabcheck():
        e("""    s_xor_b64 s[40:41], s[40:41], s[50:51]
    s_xor_b64 s[42:43], s[42:43], s[50:51]
    s_or_b64 s[40:41], s[40:41], s[42:43]""")
        if not o.local:
            e("    s_or_b32 s40, s40, 1")
        if o.notab:
            e("    s_and_b64 s[40:41], s[40:41], 0")
    def reduce_publish(addr_lds, off, addr_g, far, done):
        e(f"""    ds_read_b128 v[32:35], {addr_lds} offset:{off}
    ds_read_b128 v[36:39], {addr_lds} offset:{off+2048}
    ds_read_b128 v[40:43], {addr_lds} offset:{off+4096}
    ds_read_b128 v[44:47], {addr_lds} offset:{off+6144}
    s_waitcnt lgkmcnt(2)
    v_pk_add_f32 v[32:33], v[32:33], v[36:37]
    v_pk_add_f32 v[34:35], v[34:35], v[38:39]
    s_waitcnt lgkmcnt(1)
    v_pk_add_f32 v[32:33], v[32:33], v[40:41]
    v_pk_add_f32 v[34:35], v[34:35], v[42:43]
    s_waitcnt lgkmcnt(0)
    v_pk_add_f32 v[32:33], v[32:33], v[44:45]
    v_pk_add_f32 v[34:35], v[34:35], v[46:47]
    v_perm_b32 v32, v32, v25, s34
    s_cbranch_scc1 {far}
    global_store_dwordx4 {addr_g}, v[32:35], s[16:17]
{done}:""")
    e(f"""    s_load_dword s28, s[16:17], 0
    s_mov_b32 s34, 0x07060500
    s_bitcmp1_b32 s3, 6
    s_cselect_b32 s48, 8, 0
    s_bitcmp1_b32 s38, s48
    s_cselect_b32 s48, -1, 0
    s_mov_b32 s49, 0
    s_mov_b32 s30, 0x0c0c0100
    s_mov_b32 s31, 0x0c0c0302
    s_mov_b32 vcc_lo, 0x33333333
    s_mov_b32 vcc_hi, 0x33333333
    v_and_b32 v9, 1, v0
    v_lshlrev_b32 v9, 4, v9
    v_alignbit_b32 v2, s30, s30, v9
    v_alignbit_b32 v3, s31, s31, v9
    v_mov_b32 v9, 0x0c0c0c0c
    v_cndmask_b32 v28, v9, v2, vcc
    v_cndmask_b32 v29, v2, v9, vcc
    v_cndmask_b32 v30, v9, v3, vcc
    v_cndmask_b32 v31, v3, v9, vcc
    v_bfe_u32 v9, v0, 4, 2
    v_lshlrev_b32 v9, 2, v9
    v_xor_b32 v9, v9, v1
    v_lshlrev_b32 v12, 4, v9
    v_lshrrev_b32 v3, 6, v0                ; wv
    v_lshl_add_u32 v12, v3, 11, v12
    v_lshl_add_u32 v8, v8, 1, v7
    v_bfe_u32 v9, v0, 1, 2
    v_xor_b32 v8, v8, v9
    v_bfe_u32 v9, v0, 1, 3
    v_lshlrev_b32 v13, 8, v9
    v_lshl_add_u32 v13, v8, 6, v13
    v_and_b32 v9, 1, v0
    v_lshl_add_u32 v13, v9, 5, v13
    v_bfe_u32 v9, v0, 4, 1
    v_lshl_add_u32 v13, v9, 4, v13""")
    assert o.pp < o.win // 2 and o.xp < o.win // 2
    after_x = o.win - 2*o.xp + (1 if o.pp >= o.xp else 0)
    def after_row(r): return min(15 - r, o.win - 1) + (1 if r < 2*o.xp else 0) + (1 if r <= 2*o.pp + 1 else 0)
    e(f"    s_waitcnt vmcnt({after_x})")
    for d in range(8):
        e(f"    v_mov_b32_dpp v{16+d}, v{26+d%2} quad_perm:[{d//2},{d//2},{d//2},{d//2}] row_mask:0xf bank_mask:0xf")
    for r in range(16):
        for t in range(2):
            e(f"    v_perm_b32 v{BT+2*r+t}, v{16+r//2}, v{16+r//2}, v{28+2*(r%2)+t}")
    e("""    s_cmp_ge_u32 s2, 224
    s_cbranch_scc1 L_helper""")
    order = [int(t) for t in o.order.split(",")]
    def wdload(k):
        k = order[k]
        e(f"    global_load_dwordx4 v[{WD+4*k}:{WD+4*k+3}], v{WA+k//4}, s[10:11] offset:{2048*(k%4)-4096}{' nt' if o.ntd else ''}")
    def phase1(worker, far, done):
        nw = 0
        for r in range(16):
            e(f"    s_waitcnt vmcnt({after_row(r) + nw})")
            if r == 15: stamp(3)
            if r + o.win < 16:
                k_ = r + o.win
                if r == 0: e("    s_mov_b64 exec, s[38:39]")
                e(f"    global_load_dwordx4 v[{W1+4*k_}:{W1+4*k_+3}], v[10:11], off offset:{-3584 if k_ % 2 == 0 else 3584}{NT}")
                if k_ % 2 == 1 and k_ < 15:
                    e("    v_lshl_add_u64 v[10:11], v[10:11], 0, s[24:25]")
                if k_ == 15: e("    s_mov_b64 exec, -1")
            if worker and r < 15:
                while nw < n1 and sched[nw] == r:
                    wdload(nw); nw += 1
            for h in range(2):
                cc = "0" if r == 0 else f"v[{ACC+4*h}:{ACC+4*h+3}]"
                e(f"    v_mfma_f32_16x16x16_bf16 v[{ACC+4*h}:{ACC+4*h+3}], v[{BT+2*r}:{BT+2*r+1}], v[{W1+4*r+2*h}:{W1+4*r+2*h+1}], {cc}")
            if r == 7:
                e("""    s_lshl_b32 s22, s18, 4
    s_load_dwordx4 s[40:43], s[14:15], s22""")
            if r == 13:
                e("    s_waitcnt lgkmcnt(0)")
                tagsetup()
                tabcheck()
        k15 = 0
        if worker:
            while nw < n1:
                wdload(nw); nw += 1; k15 += 1
        e(f"""    s_nop {6 - k15}
    ds_write_b128 v12, v[{ACC}:{ACC+3}]
    ds_write_b128 v12, v[{ACC+4}:{ACC+7}] offset:1024
    s_mov_b64 exec, s[48:49]
    s_waitcnt lgkmcnt(0)
    s_barrier
    s_cbranch_execz {done}""")
        reduce_publish("v13", 0, "v14", far, done)
        e("    s_mov_b64 exec, -1")
    e(f"""    s_lshr_b32 s19, s2, 3                  ; i
    v_bfe_u32 v2, v0, 5, 1
    v_lshlrev_b32 v4, 13, v2
    v_bfe_u32 v2, v0, 4, 1
    v_lshl_add_u32 v4, v2, 15, v4
    v_lshl_add_u32 v4, v3, 16, v4
    v_and_b32 v5, 15, v0
    v_lshl_add_u32 v4, v5, 4, v4
    s_lshl_b32 s22, s19, 18
    s_lshl_b32 s23, s18, 8
    s_add_u32 s22, s22, s23
    s_add_u32 s22, s22, 4096
    v_add_u32 v{WA}, s22, v4
    v_add_u32 v{WA+1}, 0x4000, v{WA}
    v_bfe_u32 v2, v0, 3, 2
    v_lshl_add_u32 v2, v3, 2, v2           ; piece
    v_mul_u32_u24 v15, 3584, v2
    v_and_b32 v2, 7, v0
    v_lshl_add_u32 v15, v2, 4, v15
    s_mul_i32 s22, s18, 57344
    s_lshl_b32 s23, s19, 7
    s_add_u32 s22, s22, s23
    s_add_u32 s22, s22, {P2}
    v_add_u32 v15, s22, v15
""")
    if o.par >= 0:
        e(f"""    s_and_b32 s22, s19, 28
    s_add_u32 s22, s22, s19
    s_getreg_b32 s23, hwreg(HW_REG_XCC_ID, 2, 1)
    s_xor_b32 s23, s23, {o.par}
    s_lshl_b32 s23, s23, 2
    s_add_u32 s22, s22, s23
    s_lshl_b32 s22, s22, 11""")
    else:
        e("    s_lshl_b32 s22, s19, 11")
    e(f"""    ; h offset: HR + i*2048 + tid*8
    s_add_u32 s22, s22, {HR}
    v_lshl_add_u32 v196, v0, 3, s22
    v_lshlrev_b32 v197, 4, v1
    v_lshl_add_u32 v197, v3, 11, v197
    v_add_u32 v197, 8192, v197
    v_and_b32 v204, 1, v0
    v_mul_u32_u24 v204, 0x5555, v204
    v_add_u32 v204, 0x8888, v204
    v_lshlrev_b32 v202, 4, v1
    v_lshl_add_u32 v202, v3, 9, v202
    v_mov_b32 v198, 0
    v_mov_b32 v199, 0""")
    for k in range(16):
        e(f"    v_mov_b32 v{ACC+8+k}, 0")
    e("""    s_mov_b32 s31, 0x07060302
    s_mov_b32 s33, 0x40000""")
    phase1(True, "L_pub_far", "L_pub_done")
    stamp(4)
    if o.pbar: e("    s_barrier")
    n2 = o.n2 if o.n2 else 8
    for k in range(n1, n2): wdload(k)
    if n2 < 8:
        e(f"    s_waitcnt vmcnt({n2-n1-1})")
        for k in range(n2, 8): wdload(k)
    def hld(first=False):
        if o.atom == 3 and first:
            e("    v_add_u32 v8, 0x10000, v196")
            e("    global_load_dwordx2 v[200:201], v8, s[16:17] sc1")
        elif o.atom in (1, 3) or (o.atom == 2 and not first):
            e("    global_atomic_add_x2 v[200:201], v196, v[198:199], s[16:17] sc0")
        else:
            e("    global_load_dwordx2 v[200:201], v196, s[16:17] sc1")
    issued = 0
    for d in range(4):
        e(f"    s_waitcnt vmcnt({6 - 2*d + issued})")
        if d == 3: stamp(5)
        if 6 - 2*d == o.pk:
            if o.tg:
                e(f"""    s_add_u32 s60, s60, {o.tg}
L_tg:
    s_memrealtime s[62:63]
    s_waitcnt lgkmcnt(0)
    s_sub_u32 s62, s62, s60
    s_cmp_lt_i32 s62, 0
    s_cbranch_scc1 L_tg""")
            if o.slp: e(f"    s_sleep {o.slp}")
            hld(True); issued = 1
        for k in (order[2*d], order[2*d+1]):
            for c in range(4):
                e(f"    v_mov_b32 v{BT+8*c+k}, v{WD+4*k+c}")
    e("""L_pollh:
    s_waitcnt vmcnt(0)
    v_perm_b32 v9, v201, v200, s31
    v_cmp_ne_u32_sdwa vcc, v200, s52 src0_sel:WORD_0 src1_sel:WORD_0
    v_cmp_ne_u32_sdwa s[44:45], v201, s52 src0_sel:WORD_0 src1_sel:WORD_1""")
    for d in range(4):
        e(f"    v_mov_b32_dpp v{16+d}, v9 quad_perm:[{d},{d},{d},{d}] row_mask:0xf bank_mask:0xf")
    e("""    s_or_b64 s[44:45], s[44:45], vcc
    s_cbranch_scc1 L_pollh_again
L_pollh_done:""")
    stamp(6)
    A2 = ACC + 8
    for c in range(4):
        e(f"    v_smfmac_f32_16x16x64_bf16 v[{A2+4*c}:{A2+4*c+3}], v[16:19], v[{BT+8*c}:{BT+8*c+7}], v204")
    e(f"""    s_cmp_lg_u64 s[40:41], 0
    s_nop 4
    ds_write2_b64 v197, v[{A2}:{A2+1}], v[{A2+4}:{A2+5}] offset0:0 offset1:1
    s_nop 0
    ds_write2_b64 v197, v[{A2+8}:{A2+9}], v[{A2+12}:{A2+13}] offset0:128 offset1:129""")
    e("""    s_mov_b32 exec_hi, 0
    s_waitcnt lgkmcnt(0)
    s_barrier""")
    if stamp(7): e("    s_waitcnt lgkmcnt(0)")
    reduce_publish("v202", 8192, "v15", "L_pub2_far", "L_pub2_done")
    stamp(8)
    if o.wb == 1:
        e("""    s_add_u32 s22, s19, s3
    s_cmp_eq_u32 s22, 0
    s_cbranch_scc0 L_nowb
    buffer_wbl2 sc1
L_nowb:""")
    g.count(9)
    g.flag(10)
    g.fin("A", 11)
    e("L_pollh_again:")
    hld()
    e("""    s_sub_u32 s33, s33, 1
    s_cbranch_scc0 L_pollh
    s_branch L_pollh_done
L_pub_far:
    global_store_dwordx4 v14, v[32:35], s[16:17] sc1
    s_branch L_pub_done
L_pub2_far:
    global_store_dwordx4 v15, v[32:35], s[16:17] sc1
    s_branch L_pub2_done
L_hpub_far:
    global_store_dwordx4 v14, v[32:35], s[16:17] sc1
    s_branch L_hpub_done""")
    g.role = "C"
    R = 160
    def hsetup():
        e(f"""    s_lshr_b32 s19, s3, 6
    s_lshl_b32 s22, s21, 2
    s_add_u32 s19, s19, s22                ; job
    s_mul_i32 s44, s18, 14
    s_add_u32 s44, s44, s19
    s_lshr_b32 s22, s44, 1
    s_lshl_b32 s22, s22, 13
    s_and_b32 s23, s44, 1
    s_lshl_b32 s23, s23, 9
    s_add_u32 s22, s22, s23
    s_add_u32 s22, s22, {P1 + 4096}
    v_lshl_add_u32 v192, v1, 3, s22
    s_and_b32 s22, s44, {112 if o.par >= 0 else 0}
    s_add_u32 s22, s22, s44
    s_lshl_b32 s22, s22, 9
    s_add_u32 s22, s22, {HR}
    v_lshl_add_u32 v193, v1, 3, s22        ; h offset
    v_add_u32 v200, {0x10000 if o.atom == 3 else 8192}, v193
    v_bfe_u32 v4, v0, 1, 2
    v_lshlrev_b32 v194, 3, v4
    v_and_b32 v4, 1, v0
    v_sub_u32 v4, 1, v4
    v_mul_u32_u24 v195, 0xff, v4
    s_mul_i32 s22, s19, 3584
    s_mul_i32 s23, s18, 57344
    s_add_u32 s22, s22, s23
    s_add_u32 s22, s22, {P2}
    v_lshl_add_u32 v196, v1, 4, s22
    s_bfe_u32 s22, s19, 0x20001
    s_lshl_b32 s22, s22, 11
    s_lshl_b32 s23, s18, 8
    s_add_u32 s22, s22, s23
    s_and_b32 s23, s19, 1
    s_lshl_b32 s23, s23, 7
    s_add_u32 s22, s22, s23
    s_and_b32 s23, s19, 8
    s_add_u32 s22, s22, s23
    v_and_b32 v2, 7, v0
    v_lshl_add_u32 v197, v2, 4, s22
    v_bfe_u32 v2, v0, 4, 1
    v_lshl_add_u32 v197, v2, 2, v197
    v_bfe_u32 v2, v0, 5, 1
    v_lshl_add_u32 v197, v2, 1, v197
    v_mov_b32 v{R+13}, 0
    v_mov_b32 v{R+14}, 0
    v_mov_b32 v{R+15}, 0
    s_mov_b32 s30, 0x05040100
    s_mov_b32 s31, 0x07060302
    s_mov_b32 s33, 0x40000
    s_mov_b32 s26, 0x00ff00ff
    s_mov_b32 s27, s26""")
    e("""L_hidle:
    s_load_dword s28, s[16:17], 0""")
    if diag:
        e(f"    s_mov_b32 s{SB+2}, s{SB}")
    if o.prewh:
        e(f"""    s_lshl_b32 s22, s21, 8
    s_add_u32 s22, s22, s3
    s_mul_i32 s22, s22, 56
    s_add_u32 s22, s22, {HR}
    v_lshl_add_u32 v9, v1, 3, s22
    v_mov_b32 v2, 0
    v_mov_b32 v3, 0""")
        for k in range(7):
            if o.prewh == 1:
                e(f"    global_atomic_add_x2 v9, v[2:3], s[16:17] offset:{512*k}")
            else:
                e(f"    global_load_dwordx2 v[{100+2*k}:{101+2*k}], v9, s[16:17] offset:{512*k}")
    if diag:
        e(f"    s_mov_b32 s{SB+4}, s{SB}")
        e(f"    s_mov_b32 s{SB+6}, s{SB}")
    hsetup()
    e("    s_waitcnt lgkmcnt(0)")
    tagsetup()
    e("""    s_branch L_hjob
L_helper:""")
    hsetup()
    phase1(False, "L_hpub_far", "L_hpub_done")
    e("""L_hjob:
    v_lshrrev_b32 v194, v194, s52
    v_mov_b32 v198, s52
    s_movk_i32 s45, 0x80
    s_mov_b32 s46, 0xbfb8aa3b              ; -log2(e)
    s_mov_b32 s47, s46""")
    if o.hd:
        for i in range(8):
            e(f"    v_not_b32 v{48+2*i}, v194")
    e("    s_cmp_ge_u32 s19, 14")
    stamp(4)
    if diag:
        e(f"    s_mov_b32 s{SB+10}, s{SB}")
    e("""    s_cbranch_scc1 L_hbar
L_poll1:""")
    if o.hs: e(f"    s_sleep {o.hs}")
    for i in range(8):
        e(f"    global_load_dwordx2 v[{48+2*i}:{49+2*i}], v192, s[16:17] offset:{-4096+1024*i} sc1")
    e("""    s_sub_u32 s33, s33, 1
    s_cbranch_scc1 L_poll1_done""")
    e("""    s_waitcnt vmcnt(6)
    v_bitop3_b32 v72, v194, v48, v50 bitop3:0x7e
    v_bfi_b32 v48, v195, s45, v48
    v_bfi_b32 v50, v195, s45, v50
    v_pk_add_f32 v[76:77], v[48:49], v[50:51]
    s_waitcnt vmcnt(4)
    v_bitop3_b32 v73, v194, v52, v54 bitop3:0x7e
    v_bfi_b32 v52, v195, s45, v52
    v_bfi_b32 v54, v195, s45, v54
    v_pk_add_f32 v[78:79], v[52:53], v[54:55]
    v_pk_add_f32 v[64:65], v[76:77], v[78:79]
    s_waitcnt vmcnt(2)
    v_bitop3_b32 v74, v194, v56, v58 bitop3:0x7e
    v_cvt_pk_bf16_f32 v68, v64, v65
    v_or3_b32 v72, v72, v73, v74
    v_lshlrev_b32 v64, 16, v68
    v_and_b32 v65, 0xffff0000, v68
    s_waitcnt vmcnt(0)
    v_bitop3_b32 v75, v194, v60, v62 bitop3:0x7e
    v_bitop3_b32 v72, v72, v75, v195 bitop3:0xa8
    v_cmp_ne_u32 vcc, 0, v72
    v_pk_mul_f32 v[70:71], v[64:65], s[46:47]
    s_cbranch_vccnz L_poll1
L_poll1_done:""")
    stamp(5)
    e("""    v_exp_f32 v70, v70
    v_exp_f32 v71, v71
    v_bfi_b32 v56, v195, s45, v56
    v_bfi_b32 v58, v195, s45, v58
    v_pk_add_f32 v[70:71], v[70:71], 1.0 op_sel_hi:[1,0]
    v_bfi_b32 v60, v195, s45, v60
    v_rcp_f32 v70, v70
    v_rcp_f32 v71, v71
    v_bfi_b32 v62, v195, s45, v62
    v_pk_add_f32 v[80:81], v[56:57], v[58:59]
    v_pk_add_f32 v[82:83], v[60:61], v[62:63]
    v_pk_mul_f32 v[70:71], v[64:65], v[70:71]   ; silu
    v_pk_add_f32 v[66:67], v[80:81], v[82:83]
    v_cvt_pk_bf16_f32 v71, v70, v71
    v_cvt_pk_bf16_f32 v69, v66, v67
    v_lshlrev_b32 v70, 16, v71
    v_and_b32 v71, 0xffff0000, v71
    v_lshlrev_b32 v66, 16, v69
    v_and_b32 v67, 0xffff0000, v69
    v_pk_mul_f32 v[70:71], v[70:71], v[66:67]
    v_cvt_pk_bf16_f32 v71, v70, v71
    v_perm_b32 v70, v71, v198, s30
    v_perm_b32 v71, v71, v198, s31
    s_barrier
    global_store_dwordx2 v193, v[70:71], s[16:17] sc1""")
    if o.par >= 0 or o.atom == 3:
        e("    global_store_dwordx2 v200, v[70:71], s[16:17] sc1")
    e("L_cjob:")
    stamp(6)
    if o.cw >= 2: e("    s_waitcnt vmcnt(0)")
    e("""    global_load_ushort v7, v197, s[12:13]
    s_mov_b32 s33, 0x40000""")
    assert o.cd == 0
    e(f"""    v_mov_b32 v199, 0xff
    v_not_b32 v{R}, v25
    v_not_b32 v{R+4}, v25
    v_not_b32 v{R+8}, v25
    v_and_b32 v{R+12}, 0xff, v25
    s_mov_b32 exec_hi, 0
    v_not_b32 v{R+12}, v25
    s_mov_b64 s[4:5], -1
    s_mov_b64 s[6:7], -1
    s_mov_b64 s[8:9], -1
    s_mov_b64 s[10:11], exec""")
    if o.cw >= 1: e("    s_waitcnt vmcnt(0)")
    e("L_poll2:")
    if o.cs: e(f"    s_sleep {o.cs}")
    for t in range(4):
        if o.cmask:
            e(f"    s_wqm_b64 exec, s[{4+2*t}:{5+2*t}]")
        elif t in (0, 3):
            e(f"    s_mov_b32 exec_hi, {-1 if t == 0 else 0}")
        e(f"    global_load_dwordx4 v[{R+4*t}:{R+3+4*t}], v196, s[16:17] offset:{1024*t} sc1")
    e(f"""    s_mov_b64 exec, -1
    s_sub_u32 s33, s33, 1
    s_cbranch_scc1 L_poll2_done
    s_waitcnt vmcnt({o.cd})""")
    for t in range(4):
        e(f"    v_cmp_ne_u32_sdwa s[{4+2*t}:{5+2*t}], v{R+4*t}, v25 src0_sel:BYTE_0 src1_sel:BYTE_0")
    e(f"""    v_pk_add_f32 v[34:35], v[{R+2}:{R+3}], v[{R+6}:{R+7}]
    s_or_b64 s[42:43], s[4:5], s[6:7]
    s_or_b64 s[46:47], s[8:9], s[10:11]
    s_or_b64 s[42:43], s[42:43], s[46:47]
    s_cbranch_scc1 L_poll2
L_poll2_done:
    v_bfi_b32 v{R}, v199, s45, v{R}
    v_bfi_b32 v{R+4}, v199, s45, v{R+4}
    v_bfi_b32 v{R+8}, v199, s45, v{R+8}
    v_bfi_b32 v{R+12}, v199, s45, v{R+12}
    v_pk_add_f32 v[32:33], v[{R}:{R+1}], v[{R+4}:{R+5}]
    v_pk_add_f32 v[36:37], v[{R+8}:{R+9}], v[{R+12}:{R+13}]
    v_pk_add_f32 v[38:39], v[{R+10}:{R+11}], v[{R+14}:{R+15}]
    v_pk_add_f32 v[32:33], v[32:33], v[36:37]
    v_pk_add_f32 v[34:35], v[34:35], v[38:39]
    s_nop 0""")
    stamp(7)
    e(f"""    v_permlane32_swap_b32 v32, v33
    v_permlane32_swap_b32 v34, v35
    v_add_f32 v32, v32, v33
    v_add_f32 v34, v34, v35
    s_nop 1
    v_permlane16_swap_b32 v32, v34
    v_add_f32 v32, v32, v34
    s_nop 1
    v_add_f32_dpp v32, v32, v32 row_ror:8 row_mask:0xf bank_mask:0xf
    v_cvt_pk_bf16_f32 v32, v32, v32
    s_mov_b64 exec, s[26:27]
    global_store_short v197, v32, s[12:13]""")
    if o.upd:
        e("""    s_add_u32 s22, s18, s19
    s_cmp_eq_u32 s22, 0
    s_cbranch_scc0 L_c_noupd
    v_mov_b32 v6, 0
    v_mov_b32 v7, s28
    s_mov_b64 exec, 1
    global_store_dword v6, v7, s[16:17]
L_c_noupd:""")
    stamp(8)
    if o.stamps:
        e("    s_waitcnt vmcnt(0)")
    stamp(9)
    g.count(10)
    g.fin("C", 11)
    e(f"""L_hbar:
    s_barrier
{"    buffer_wbl2 sc1" if o.wb == 2 else ""}
    s_branch L_cjob
L_end:
    s_endpgm
.section .rodata,"a"
.p2align 6
.amdhsa_kernel {NAME}
  .amdhsa_next_free_vgpr 208
  .amdhsa_next_free_sgpr {100 if (diag or o.tg) else 56}
  .amdhsa_accum_offset 208
  .amdhsa_group_segment_fixed_size 0
  .amdhsa_kernarg_size 56
  .amdhsa_user_sgpr_count 2
  .amdhsa_user_sgpr_kernarg_segment_ptr 1
  .amdhsa_system_sgpr_workgroup_id_x 1
  .amdhsa_float_denorm_mode_32 3
.end_amdhsa_kernel""")
    return "\n".join(g.L) + "\n"

if __name__ == "__main__":
    ap = argparse.ArgumentParser()
    ap.add_argument("-o", required=True)
    ap.add_argument("--stamps", action="store_true")
    for k, v in dict(nt=1, local=1, pk=4, atom=1, xp=2, pp=5, upd=1, pbar=1, hd=0, cd=0, cmask=1, prewh=0, notab=0, tg=0, cw=0, prent=0, ntd=1, n2=0, wb=0, par=-1, slp=0, hs=0, cs=0, win=16).items():
        ap.add_argument("--" + k, type=int, default=v)
    ap.add_argument("--sched", default="10,10,10")
    ap.add_argument("--order", default="0,1,2,3,4,5,6,7")
    ap.add_argument("--amp")
    ap.add_argument("--hold")
    a = ap.parse_args()
    open(a.o, "w").write(gen(a))
```
